```python
import torch

def _softmax(x, axis=-1):
    return torch.softmax(x, dim=axis)
def _gelu(x):
    return torch.nn.functional.gelu(x, approximate="tanh")
def _silu(x):
    return torch.nn.functional.silu(x)
def _sigmoid(x):
    return torch.sigmoid(x)
def _layernorm(x, axis=-1, eps=1e-5):
    m = x.mean(dim=axis, keepdim=True)
    v = x.var(dim=axis, keepdim=True, unbiased=False)
    return (x - m) / torch.sqrt(v + eps)
def _scatter_add(tgt, idx, src, axis=0):
    return tgt.clone().index_add_(axis, idx, src)
def _segment_sum(src, seg, n):
    out = torch.zeros((n,) + src.shape[1:], dtype=src.dtype)
    return out.index_add_(0, seg, src)
def _pad(x, pw):
    flat = tuple(v for pair in reversed(pw) for v in pair)
    return torch.nn.functional.pad(x, flat)

kernel_name = 'standalone__instancenorm__sampling'

def setup_inputs():

    _w = (lambda a: (lambda t: t.to(torch.bfloat16) if t.is_floating_point() else t)(torch.as_tensor(a)))
    B, C, H, W = 32, 512, 32, 32
    return {
        "x": _w(abs((lambda *s: torch.randn(*s, dtype=torch.bfloat16) * 0.05)(B, C, H, W))),
        "g": _w((lambda *s: torch.randn(*s, dtype=torch.bfloat16) * 0.05)(C) + 1.0),
        "b": _w((lambda *s: torch.randn(*s, dtype=torch.bfloat16) * 0.4)(C)),
    }

def reference(x, g, b):
    mu = x.mean(axis=(-2, -1), keepdims=True)
    var = ((x - mu) ** 2).mean(axis=(-2, -1), keepdims=True)
    xhat = (x - mu) / torch.sqrt(var + 1e-5)
    return xhat * g.reshape(1, -1, 1, 1) + b.reshape(1, -1, 1, 1)
```

```python
import sys, argparse

HEADER = """; Kernarg layout for this problem (48 bytes, ptrs only, base s[0:1]):
;   offset   0: d_in[0] x  shape=(32, 512, 32, 32) dtype=bfloat16 strides=(1048576, 2048, 64, 2) contiguous=True
;   offset   8: d_in[1] g  shape=(512,) dtype=bfloat16 strides=(2,) contiguous=True
;   offset  16: d_in[2] b  shape=(512,) dtype=bfloat16 strides=(2,) contiguous=True
"""
NAME = "standalone__instancenorm__sampling_kernel"
TOTAL = 32 << 20


def gen(lpr=16, waves=4, nwg=256, P=1, ld=" nt", st=" sc1", K=0, stamps=False, fine=True, vg=0, loc=True, prio=0, touch=0, rev=0, hold=0, nost=0, num=8, den=8, d0=0, sw=0, early=1, bar=0, dum=0, dstride=16, dn=2, dx=4, tp=0):
    L = []
    A = L.append
    rows = 64 // lpr
    C = 2048 * rows
    U = C // 1024
    step = lpr * 16
    lg = lpr.bit_length() - 1
    nw = nwg * waves
    I = TOTAL // (nw * C)
    assert I * nw * C == TOTAL and I <= 8
    P = min(P, I)
    def cum(it):
        if it == I - 1: return I * U
        return max(0, min((it + 1) * U, ((it + 1 - d0) * U * num + den // 2) // den))
    nbuf = P + 1
    while nbuf < I and any(cum(c + nbuf - P - 1) < (c + 1) * U for c in range(I - nbuf)):
        nbuf += 1
    nbuf = min(nbuf, I)
    stride = TOTAL // I
    cpb = 8192 // C
    A(HEADER + f"; @launch grid=({nwg},1,1) block=({waves*64},1,1) lds=0")
    A('.amdgcn_target "amdgcn-amd-amdhsa--gfx950"')
    A(".text")
    A(f".globl {NAME}")
    A(".p2align 8")
    A(f".type {NAME},@function")
    A(f"{NAME}:")
    if stamps:
        A("    s_memrealtime s[50:51]")
        A("    s_load_dwordx2 s[44:45], s[0:1], 40")
    A("    s_load_dwordx4 s[4:7], s[0:1], 0       ; x, g")
    A("    s_load_dwordx4 s[8:11], s[0:1], 16     ; b, out")
    A(f"    s_cmp_ge_u32 s2, {nwg}")
    A("    s_cbranch_scc1 L_done")
    A("    v_lshrrev_b32 v1, 6, v0")
    A("    v_and_b32 v2, 63, v0                   ; lane")
    A("    v_readfirstlane_b32 s20, v1")
    A(f"    v_lshrrev_b32 v1, {lg}, v2")
    A(f"    v_and_b32 v2, {lpr-1}, v2")
    A("    v_lshlrev_b32 v2, 4, v2")
    A("    v_lshl_add_u32 v2, v1, 11, v2")
    A("    v_lshlrev_b32 v3, 1, v1")
    if loc:
        A("    s_lshr_b32 s3, s2, 3")
        A("    s_lshl_b32 s3, s3, 2")
        A("    s_and_b32 s21, s2, 3")
        A("    s_add_u32 s3, s3, s21")
        A(f"    s_mul_i32 s3, s3, {waves}")
        A("    s_add_u32 s3, s3, s20")
        if cpb > 1:
            A(f"    s_and_b32 s21, s3, {cpb-1}")
            A(f"    s_lshr_b32 s3, s3, {cpb.bit_length()-1}")
            A(f"    s_lshl_b32 s21, s21, {C.bit_length()-1}")
        A("    s_lshr_b32 s22, s3, 7")
        A("    s_lshr_b32 s23, s2, 2")
        A("    s_xor_b32 s22, s22, s23")
        if K:
            A("    s_xor_b32 s22, s22, 1")
        A("    s_and_b32 s22, s22, 1")
        A("    s_lshl_b32 s3, s3, 1")
        A("    s_add_u32 s3, s3, s22")
        A("    s_lshl_b32 s32, s3, 13")
        if cpb > 1:
            A("    s_add_u32 s32, s32, s21")
    else:
        A(f"    s_mul_i32 s3, s2, {waves}")
        A("    s_add_u32 s3, s3, s20")
        A(f"    s_lshl_b32 s32, s3, {C.bit_length()-1}")
    if rev:
        A(f"    s_add_u32 s32, s32, {(I-1)*stride}")
    for it in range(1, I):
        A(f"    s_{'sub' if rev else 'add'}_u32 s{32+it}, s32, {it*stride}")
    if dum:
        A("    v_and_b32 v14, 63, v0")
        A(f"    v_mul_u32_u24 v14, {dstride}, v14")
        for k in range(dum):
            A(f"    s_xor_b32 s{40+k}, s{32+k}, {waves * C * 2}")
            if dstride > 16:
                A(f"    s_and_b32 s{40+k}, s{40+k}, {0xffffffff & ~(8191)}")
    A("    s_lshr_b32 s24, s32, 10")
    A("    s_and_b32 s24, s24, 1023               ; (first row % 512) * 2")
    A("    v_mov_b32 v4, 0")
    A("    v_mov_b32 v5, 0")
    A("    s_mov_b32 s14, 0x2000000")
    A("    s_mov_b32 s15, 0x20000")
    A("    s_mov_b32 s18, 1024")
    A("    s_mov_b32 s19, 0x20000")
    A("    s_mov_b32 s22, 1024")
    A("    s_mov_b32 s23, 0x20000")
    A("    s_mov_b32 s30, 0x2000000")
    A("    s_mov_b32 s31, 0x20000")
    A("    s_mov_b32 s25, 0x3f803f80              ; bf16 (1.0, 1.0)")
    A("    s_mov_b32 s26, 0xffff0000")
    if stamps:
        A("    s_mov_b32 s46, 0x10000000")
        A("    s_mov_b32 s47, 0x20000")
        A(f"    s_mul_i32 s48, s2, {waves}")
        A("    s_add_u32 s48, s48, s20")
    A("    s_waitcnt lgkmcnt(0)")
    A("    s_mov_b32 s12, s4")
    A("    s_mov_b32 s13, s5")
    DATA = 16
    npk = 4 * U
    F = DATA + nbuf * npk
    DUM = F + 2 * npk
    ops = []

    def buf(it):
        return DATA + (it % nbuf) * npk

    def load(it, u):
        b = buf(it) + 4 * u
        A(f"    buffer_load_dwordx4 v[{b}:{b+3}], v2, s[12:15], s{32+it} offen offset:{u*step}{ld}")
        ops.append(("l", it, u))

    def dummy(k, u):
        if dx == 4:
            A(f"    buffer_load_dwordx4 v[{DUM}:{DUM+3}], v14, s[12:15], s{40+k} offen offset:{u*1024}{ld}")
        else:
            A(f"    buffer_load_dword v{DUM}, v14, s[12:15], s{40+k} offen offset:{u*64}{ld}")
        ops.append(("d", k, u))

    def wait(tag):
        n = len(ops) - 1 - ops.index(tag)
        assert n <= 63
        A(f"    s_waitcnt vmcnt({n})")

    for it in range(P):
        for u in range(U):
            load(it, u)
        if it == 0:
            A("    s_mov_b32 s16, s6")
            A("    s_mov_b32 s17, s7")
            A("    s_mov_b32 s20, s8")
            A("    s_mov_b32 s21, s9")
            A("    s_mov_b32 s28, s10")
            A("    s_mov_b32 s29, s11")
            A("    buffer_load_short_d16_hi v4, v3, s[16:19], s24 offen   ; g")
            A("    buffer_load_short_d16_hi v5, v3, s[20:23], s24 offen   ; b")
            ops.append(("g",)); ops.append(("b",))
            if touch:
                A("    s_lshl_b32 s49, s48, 4")
                A("    v_mov_b32 v14, 0")
                A("    buffer_load_dword v15, v14, s[44:47], s49 offen")
                ops.append(("t",))

    def reduce(reg):
        for r in (8, 4, 2, 1):
            A("    s_nop 1")
            A(f"    v_add_f32_dpp v{reg}, v{reg}, v{reg} row_ror:{r} row_mask:0xf bank_mask:0xf")
        if lpr >= 32:
            A(f"    v_mov_b32 v{reg+1}, v{reg}")
            A("    s_nop 1")
            A(f"    v_permlane16_swap_b32 v{reg}, v{reg+1}")
            A(f"    v_add_f32 v{reg}, v{reg}, v{reg+1}")
        if lpr >= 64:
            A(f"    v_mov_b32 v{reg+1}, v{reg}")
            A("    s_nop 1")
            A(f"    v_permlane32_swap_b32 v{reg}, v{reg+1}")
            A(f"    v_add_f32 v{reg}, v{reg}, v{reg+1}")

    def rbf16(reg):
        A(f"    v_cvt_pk_bf16_f32 v{reg}, v{reg}, v{reg}")
        A(f"    v_and_b32 v{reg}, s26, v{reg}")

    done = [0]; stored = [0]; final = [False]
    def flush(limit):
        while stored[0] < min(limit, done[0]):
            c, u = divmod(stored[0], U)
            bb = buf(c)
            if not nost:
                if sw and final[0]:
                    A(f"    s_waitcnt vmcnt({sw-1})")
                stf = "" if stored[0] >= I * U - tp else st
                A(f"    buffer_store_dwordx4 v[{bb+4*u}:{bb+4*u+3}], v2, s[28:31], s{32+c} offen offset:{u*step}{stf}")
                ops.append(("s", c, u))
            stored[0] += 1

    for it in range(I):
        b = buf(it)
        if bar and it > 0:
            A("    s_barrier")
        if it == I - 1 and early:
            flush(I * U)
        A("    v_mov_b32 v6, 0")
        A("    v_mov_b32 v7, 0")
        A("    v_mov_b32 v8, 0")
        A("    v_mov_b32 v9, 0")
        if not fine:
            wait(("l", it, U - 1))
            if it + P < I:
                for u in range(U):
                    load(it + P, u)
        for u in range(U):
            if fine:
                wait(("l", it, u))
                if it + P < I:
                    load(it + P, u)
                elif dum and it + P - I < dum and u < dn:
                    dummy(it + P - I, u)
            if stamps == 3 and u == U - 1:
                A(f"    s_memrealtime s[{60+2*it}:{61+2*it}]")
            if stamps and u == U - 1 and it == 0:
                A("    s_memrealtime s[52:53]")
            if stamps and u == U - 1 and it == I - 1:
                A("    s_memrealtime s[54:55]")
            for j in range(4):
                A(f"    v_dot2c_f32_bf16 v{6+j}, s25, v{b+4*u+j}")
            for j in range(4):
                p = b + 4 * u + j
                f = F + 2 * (4 * u + j)
                A(f"    v_lshlrev_b32 v{f}, 16, v{p}")
                A(f"    v_and_b32 v{f+1}, s26, v{p}")
        if it == I - 1 and not early:
            flush(stored[0] + (sw if sw else I * U))
            final[0] = True
        A("    v_add_f32 v6, v6, v7")
        A("    v_add_f32 v8, v8, v9")
        A("    v_add_f32 v6, v6, v8")
        reduce(6)
        A("    v_mul_f32 v6, 0x3a800000, v6")
        rbf16(6)
        for k in range(npk):
            f = F + 2 * k
            A(f"    v_pk_add_f32 v[{f}:{f+1}], v[{f}:{f+1}], v[6:7] op_sel_hi:[1,0] neg_lo:[0,1] neg_hi:[0,1]")
        for k in range(npk):
            f = F + 2 * k
            a = 8 + 2 * (k & 1)
            if k < 2:
                A(f"    v_pk_mul_f32 v[{a}:{a+1}], v[{f}:{f+1}], v[{f}:{f+1}]")
            else:
                A(f"    v_pk_fma_f32 v[{a}:{a+1}], v[{f}:{f+1}], v[{f}:{f+1}], v[{a}:{a+1}]")
        A("    v_pk_add_f32 v[8:9], v[8:9], v[10:11]")
        A("    v_add_f32 v8, v8, v9")
        reduce(8)
        A("    v_mul_f32 v8, 0x3a800000, v8           ; var")
        rbf16(8)
        A("    v_add_f32 v8, 0x3727c5ac, v8           ; + 1e-5")
        rbf16(8)
        A("    v_sqrt_f32 v8, v8")
        A("    s_nop 0")
        rbf16(8)
        A("    v_rcp_f32 v8, v8")
        if it == 0:
            wait(("b",))
        else:
            A("    s_nop 0")
        A("    v_mul_f32 v12, v4, v8                  ; scale = g / std")
        A("    v_mov_b32 v13, v5")
        for u in range(U):
            for j in range(4):
                f = F + 2 * (4 * u + j)
                A(f"    v_pk_fma_f32 v[{f}:{f+1}], v[{f}:{f+1}], v[12:13], v[12:13] op_sel:[0,0,1] op_sel_hi:[1,0,1]")
            for j in range(4):
                k = 4 * u + j
                f = F + 2 * k
                A(f"    v_cvt_pk_bf16_f32 v{b+k}, v{f}, v{f+1}")
            done[0] = it * U + u + 1
            if not (final[0] and sw):
                flush(cum(it))
        flush(cum(it))
        if stamps == 3:
            A(f"    s_memrealtime s[{76+2*it}:{77+2*it}]")
    for k in range(P, dum):
        for u in range(dn):
            dummy(k, u)
    if stamps:
        A("    s_waitcnt vmcnt(0)")
        A("    s_memrealtime s[56:57]")
        A("    s_waitcnt lgkmcnt(0)")
        if hold:
            A("L_hold:\n    s_sleep 4\n    s_memrealtime s[58:59]\n    s_waitcnt lgkmcnt(0)\n    s_sub_u32 s58, s58, s50\n    s_cmp_lt_u32 s58, 1200\n    s_cbranch_scc1 L_hold")
        if stamps == 2:
            A("    s_getreg_b32 s52, hwreg(HW_REG_HW_ID)")
        A("    v_mov_b32 v4, s50\n    v_mov_b32 v5, s52\n    v_mov_b32 v6, s54\n    v_mov_b32 v7, s56")
        A("    s_lshl_b32 s48, s48, 4")
        A("    v_mov_b32 v3, 0")
        A("    s_mov_b64 exec, 1")
        A("    buffer_store_dwordx4 v[4:7], v3, s[44:47], s48 offen")
        if stamps == 3:
            A("    s_lshl_b32 s48, s48, 2")
            A("    s_add_u32 s48, s48, 0x100000")
            for k in range(16):
                src = (60 + 2 * k) if (k % 8) < I else 50
                A(f"    v_mov_b32 v{16+k}, s{src}")
            for k in range(4):
                A(f"    buffer_store_dwordx4 v[{16+4*k}:{19+4*k}], v3, s[44:47], s48 offen offset:{16*k}")
    A("L_done:")
    A("    s_endpgm")
    nv = max(F + 2 * npk + (4 if dum else 0), vg)
    A('.section .rodata,"a"')
    A(".p2align 6")
    A(f".amdhsa_kernel {NAME}")
    A(f"  .amdhsa_next_free_vgpr {nv}")
    A(f"  .amdhsa_next_free_sgpr {96 if stamps else 48}")
    A(f"  .amdhsa_accum_offset {(min(nv,256)+3)//4*4}")
    A("  .amdhsa_group_segment_fixed_size 0")
    A("  .amdhsa_kernarg_size 48")
    A("  .amdhsa_user_sgpr_count 2")
    A("  .amdhsa_user_sgpr_kernarg_segment_ptr 1")
    A("  .amdhsa_system_sgpr_workgroup_id_x 1")
    A("  .amdhsa_float_denorm_mode_32 3")
    A(".end_amdhsa_kernel")
    return "\n".join(L) + "\n"


def parse(sp):
    kw = {}
    for kv in sp.split(","):
        k, v = kv.split("=")
        if k in ("ld", "st"):
            kw[k] = (" " + v.replace("+", " ")) if v else ""
        else:
            kw[k] = int(v)
    return kw


if __name__ == "__main__":
    import os, json, subprocess
    outdir = sys.argv[1]
    os.makedirs(outdir, exist_ok=True)
    names = []
    for sp in sys.argv[2:]:
        fn = "k_" + sp.replace("=", "").replace(",", "_").replace("+", "") + ".s"
        open(f"{outdir}/{fn}", "w").write(gen(**parse(sp)))
        names.append(fn)
    r = subprocess.run(["python", "build.py"] + names, cwd=outdir, capture_output=True, text=True)
    if r.returncode:
        print(r.stdout, r.stderr); sys.exit(1)
    open(f"{outdir}/list.txt", "w").write(r.stdout)
    rel = os.path.relpath(os.path.abspath(outdir), "code")
    print(json.dumps(["gen/bench", f"{rel}/list.txt"] + [f"{rel}/" + x.split(":")[0] for x in r.stdout.split()]))
    print(json.dumps([f"{rel}/" + n for n in names]))
```

```python
import sys, argparse

HEADER = """; Kernarg layout for this problem (48 bytes, ptrs only, base s[0:1]):
;   offset   0: d_in[0] x  shape=(32, 512, 32, 32) dtype=bfloat16 strides=(1048576, 2048, 64, 2) contiguous=True
;   offset   8: d_in[1] g  shape=(512,) dtype=bfloat16 strides=(2,) contiguous=True
;   offset  16: d_in[2] b  shape=(512,) dtype=bfloat16 strides=(2,) contiguous=True
"""
NAME = "standalone__instancenorm__sampling_kernel"
TOTAL = 32 << 20


def gen(lpr=16, waves=4, nwg=256, P=1, ld=" nt", st=" sc1", K=0, stamps=False, fine=True, vg=0, loc=True, prio=0, touch=0, rev=0, hold=0, nost=0, num=8, den=8, d0=0, sw=0, early=1, bar=0, dum=0, dstride=16, dn=2, dx=4, tp=0, R0=0, P0=0):
    L = []
    A = L.append
    rows = 64 // lpr
    C = 2048 * rows
    U = C // 1024
    step = lpr * 16
    lg = lpr.bit_length() - 1
    nw = nwg * waves
    I = TOTAL // (nw * C)
    assert I * nw * C == TOTAL and I <= 8
    P = min(P, I)
    def cum(it):
        if it == I - 1: return I * U
        return max(0, min((it + 1) * U, ((it + 1 - d0) * U * num + den // 2) // den))
    nbuf = P + 1
    while nbuf < I and any(cum(c + nbuf - P - 1) < (c + 1) * U for c in range(I - nbuf)):
        nbuf += 1
    nbuf = min(max(nbuf, P0), I)
    stride = TOTAL // I
    cpb = 8192 // C
    A(HEADER + f"; @launch grid=({nwg},1,1) block=({waves*64},1,1) lds=0")
    A('.amdgcn_target "amdgcn-amd-amdhsa--gfx950"')
    A(".text")
    A(f".globl {NAME}")
    A(".p2align 8")
    A(f".type {NAME},@function")
    A(f"{NAME}:")
    if stamps:
        A("    s_memrealtime s[50:51]")
        A("    s_load_dwordx2 s[44:45], s[0:1], 40")
    A("    s_load_dwordx4 s[4:7], s[0:1], 0       ; x, g")
    A("    s_load_dwordx4 s[8:11], s[0:1], 16     ; b, out")
    A(f"    s_cmp_ge_u32 s2, {nwg}")
    A("    s_cbranch_scc1 L_done")
    A("    v_lshrrev_b32 v1, 6, v0")
    A("    v_and_b32 v2, 63, v0                   ; lane")
    A("    v_readfirstlane_b32 s20, v1")
    A(f"    v_lshrrev_b32 v1, {lg}, v2")
    A(f"    v_and_b32 v2, {lpr-1}, v2")
    A("    v_lshlrev_b32 v2, 4, v2")
    A("    v_lshl_add_u32 v2, v1, 11, v2")
    A("    v_lshlrev_b32 v3, 1, v1")
    if loc:
        A("    s_lshr_b32 s3, s2, 3")
        A("    s_lshl_b32 s3, s3, 2")
        A("    s_and_b32 s21, s2, 3")
        A("    s_add_u32 s3, s3, s21")
        A(f"    s_mul_i32 s3, s3, {waves}")
        A("    s_add_u32 s3, s3, s20")
        if cpb > 1:
            A(f"    s_and_b32 s21, s3, {cpb-1}")
            A(f"    s_lshr_b32 s3, s3, {cpb.bit_length()-1}")
            A(f"    s_lshl_b32 s21, s21, {C.bit_length()-1}")
        A("    s_lshr_b32 s22, s3, 7")
        A("    s_lshr_b32 s23, s2, 2")
        A("    s_xor_b32 s22, s22, s23")
        if K:
            A("    s_xor_b32 s22, s22, 1")
        A("    s_and_b32 s22, s22, 1")
        A("    s_lshl_b32 s3, s3, 1")
        A("    s_add_u32 s3, s3, s22")
        A("    s_lshl_b32 s32, s3, 13")
        if cpb > 1:
            A("    s_add_u32 s32, s32, s21")
    else:
        A(f"    s_mul_i32 s3, s2, {waves}")
        A("    s_add_u32 s3, s3, s20")
        A(f"    s_lshl_b32 s32, s3, {C.bit_length()-1}")
    if rev:
        A(f"    s_add_u32 s32, s32, {(I-1)*stride}")
    for it in range(1, I):
        A(f"    s_{'sub' if rev else 'add'}_u32 s{32+it}, s32, {it*stride}")
    if R0:
        A(f"    s_lshr_b32 s27, s{32+R0}, 10")
        A("    s_and_b32 s27, s27, 1023")
        A(f"    s_mul_i32 s3, s2, {waves}")
        A("    s_add_u32 s3, s3, s20")
        A(f"    s_lshl_b32 s32, s3, {C.bit_length()-1}")
        for it in range(1, R0):
            A(f"    s_add_u32 s{32+it}, s32, {it*stride}")
        A("    v_mov_b32 v14, 0")
        A("    v_mov_b32 v15, 0")
    if dum:
        A("    v_and_b32 v14, 63, v0")
        A(f"    v_mul_u32_u24 v14, {dstride}, v14")
        for k in range(dum):
            A(f"    s_xor_b32 s{40+k}, s{32+k}, {waves * C * 2}")
            if dstride > 16:
                A(f"    s_and_b32 s{40+k}, s{40+k}, {0xffffffff & ~(8191)}")
    A("    s_lshr_b32 s24, s32, 10")
    A("    s_and_b32 s24, s24, 1023               ; (first row % 512) * 2")
    A("    v_mov_b32 v4, 0")
    A("    v_mov_b32 v5, 0")
    A("    s_mov_b32 s14, 0x2000000")
    A("    s_mov_b32 s15, 0x20000")
    A("    s_mov_b32 s18, 1024")
    A("    s_mov_b32 s19, 0x20000")
    A("    s_mov_b32 s22, 1024")
    A("    s_mov_b32 s23, 0x20000")
    A("    s_mov_b32 s30, 0x2000000")
    A("    s_mov_b32 s31, 0x20000")
    A("    s_mov_b32 s25, 0x3f803f80              ; bf16 (1.0, 1.0)")
    A("    s_mov_b32 s26, 0xffff0000")
    if stamps:
        A("    s_mov_b32 s46, 0x10000000")
        A("    s_mov_b32 s47, 0x20000")
        A(f"    s_mul_i32 s48, s2, {waves}")
        A("    s_add_u32 s48, s48, s20")
    A("    s_waitcnt lgkmcnt(0)")
    A("    s_mov_b32 s12, s4")
    A("    s_mov_b32 s13, s5")
    DATA = 16
    npk = 4 * U
    F = DATA + nbuf * npk
    DUM = F + 2 * npk
    ops = []

    def buf(it):
        return DATA + (it % nbuf) * npk

    def load(it, u):
        b = buf(it) + 4 * u
        A(f"    buffer_load_dwordx4 v[{b}:{b+3}], v2, s[12:15], s{32+it} offen offset:{u*step}{ld}")
        ops.append(("l", it, u))

    def dummy(k, u):
        if dx == 4:
            A(f"    buffer_load_dwordx4 v[{DUM}:{DUM+3}], v14, s[12:15], s{40+k} offen offset:{u*1024}{ld}")
        else:
            A(f"    buffer_load_dword v{DUM}, v14, s[12:15], s{40+k} offen offset:{u*64}{ld}")
        ops.append(("d", k, u))

    def wait(tag):
        n = len(ops) - 1 - ops.index(tag)
        assert n <= 63
        A(f"    s_waitcnt vmcnt({n})")

    for it in range(max(P, P0)):
        for u in range(U):
            load(it, u)
        if it == 0:
            A("    s_mov_b32 s16, s6")
            A("    s_mov_b32 s17, s7")
            A("    s_mov_b32 s20, s8")
            A("    s_mov_b32 s21, s9")
            A("    s_mov_b32 s28, s10")
            A("    s_mov_b32 s29, s11")
            A("    buffer_load_short_d16_hi v4, v3, s[16:19], s24 offen   ; g")
            A("    buffer_load_short_d16_hi v5, v3, s[20:23], s24 offen   ; b")
            if R0:
                A("    buffer_load_short_d16_hi v14, v3, s[16:19], s27 offen   ; g")
                A("    buffer_load_short_d16_hi v15, v3, s[20:23], s27 offen   ; b")
                ops.append(("g2",)); ops.append(("b2",))
            ops.append(("g",)); ops.append(("b",))
            if touch:
                A("    s_lshl_b32 s49, s48, 4")
                A("    v_mov_b32 v14, 0")
                A("    buffer_load_dword v15, v14, s[44:47], s49 offen")
                ops.append(("t",))

    def reduce(reg):
        for r in (8, 4, 2, 1):
            A("    s_nop 1")
            A(f"    v_add_f32_dpp v{reg}, v{reg}, v{reg} row_ror:{r} row_mask:0xf bank_mask:0xf")
        if lpr >= 32:
            A(f"    v_mov_b32 v{reg+1}, v{reg}")
            A("    s_nop 1")
            A(f"    v_permlane16_swap_b32 v{reg}, v{reg+1}")
            A(f"    v_add_f32 v{reg}, v{reg}, v{reg+1}")
        if lpr >= 64:
            A(f"    v_mov_b32 v{reg+1}, v{reg}")
            A("    s_nop 1")
            A(f"    v_permlane32_swap_b32 v{reg}, v{reg+1}")
            A(f"    v_add_f32 v{reg}, v{reg}, v{reg+1}")

    def rbf16(reg):
        A(f"    v_cvt_pk_bf16_f32 v{reg}, v{reg}, v{reg}")
        A(f"    v_and_b32 v{reg}, s26, v{reg}")

    done = [0]; stored = [0]; final = [False]
    def flush(limit):
        while stored[0] < min(limit, done[0]):
            c, u = divmod(stored[0], U)
            bb = buf(c)
            if not nost:
                if sw and final[0]:
                    A(f"    s_waitcnt vmcnt({sw-1})")
                stf = "" if stored[0] >= I * U - tp else st
                A(f"    buffer_store_dwordx4 v[{bb+4*u}:{bb+4*u+3}], v2, s[28:31], s{32+c} offen offset:{u*step}{stf}")
                ops.append(("s", c, u))
            stored[0] += 1

    for it in range(I):
        b = buf(it)
        if bar and it > 0:
            A("    s_barrier")
        if it == I - 1 and early:
            flush(I * U)
        A("    v_mov_b32 v6, 0")
        A("    v_mov_b32 v7, 0")
        A("    v_mov_b32 v8, 0")
        A("    v_mov_b32 v9, 0")
        if not fine:
            wait(("l", it, U - 1))
            if it + P < I:
                for u in range(U):
                    load(it + P, u)
        for u in range(U):
            if fine:
                wait(("l", it, u))
                if it + P < I:
                    if ("l", it + P, u) not in ops:
                        load(it + P, u)
                elif dum and it + P - I < dum and u < dn:
                    dummy(it + P - I, u)
            if stamps == 3 and u == U - 1:
                A(f"    s_memrealtime s[{60+2*it}:{61+2*it}]")
            if stamps and u == U - 1 and it == 0:
                A("    s_memrealtime s[52:53]")
            if stamps and u == U - 1 and it == I - 1:
                A("    s_memrealtime s[54:55]")
            for j in range(4):
                A(f"    v_dot2c_f32_bf16 v{6+j}, s25, v{b+4*u+j}")
            for j in range(4):
                p = b + 4 * u + j
                f = F + 2 * (4 * u + j)
                A(f"    v_lshlrev_b32 v{f}, 16, v{p}")
                A(f"    v_and_b32 v{f+1}, s26, v{p}")
        if it == I - 1 and not early:
            flush(stored[0] + (sw if sw else I * U))
            final[0] = True
        A("    v_add_f32 v6, v6, v7")
        A("    v_add_f32 v8, v8, v9")
        A("    v_add_f32 v6, v6, v8")
        reduce(6)
        A("    v_mul_f32 v6, 0x3a800000, v6")
        rbf16(6)
        for k in range(npk):
            f = F + 2 * k
            A(f"    v_pk_add_f32 v[{f}:{f+1}], v[{f}:{f+1}], v[6:7] op_sel_hi:[1,0] neg_lo:[0,1] neg_hi:[0,1]")
        for k in range(npk):
            f = F + 2 * k
            a = 8 + 2 * (k & 1)
            if k < 2:
                A(f"    v_pk_mul_f32 v[{a}:{a+1}], v[{f}:{f+1}], v[{f}:{f+1}]")
            else:
                A(f"    v_pk_fma_f32 v[{a}:{a+1}], v[{f}:{f+1}], v[{f}:{f+1}], v[{a}:{a+1}]")
        A("    v_pk_add_f32 v[8:9], v[8:9], v[10:11]")
        A("    v_add_f32 v8, v8, v9")
        reduce(8)
        A("    v_mul_f32 v8, 0x3a800000, v8           ; var")
        rbf16(8)
        A("    v_add_f32 v8, 0x3727c5ac, v8           ; + 1e-5")
        rbf16(8)
        A("    v_sqrt_f32 v8, v8")
        A("    s_nop 0")
        rbf16(8)
        A("    v_rcp_f32 v8, v8")
        if it == 0:
            wait(("b",))
        else:
            A("    s_nop 0")
        gr, br = (14, 15) if (R0 and it >= R0) else (4, 5)
        A(f"    v_mul_f32 v12, v{gr}, v8                  ; scale = g / std")
        A(f"    v_mov_b32 v13, v{br}")
        for u in range(U):
            for j in range(4):
                f = F + 2 * (4 * u + j)
                A(f"    v_pk_fma_f32 v[{f}:{f+1}], v[{f}:{f+1}], v[12:13], v[12:13] op_sel:[0,0,1] op_sel_hi:[1,0,1]")
            for j in range(4):
                k = 4 * u + j
                f = F + 2 * k
                A(f"    v_cvt_pk_bf16_f32 v{b+k}, v{f}, v{f+1}")
            done[0] = it * U + u + 1
            if not (final[0] and sw):
                flush(cum(it))
        flush(cum(it))
        if stamps == 3:
            A(f"    s_memrealtime s[{76+2*it}:{77+2*it}]")
    for k in range(P, dum):
        for u in range(dn):
            dummy(k, u)
    if stamps:
        A("    s_waitcnt vmcnt(0)")
        A("    s_memrealtime s[56:57]")
        A("    s_waitcnt lgkmcnt(0)")
        if hold:
            A("L_hold:\n    s_sleep 4\n    s_memrealtime s[58:59]\n    s_waitcnt lgkmcnt(0)\n    s_sub_u32 s58, s58, s50\n    s_cmp_lt_u32 s58, 1200\n    s_cbranch_scc1 L_hold")
        if stamps == 2:
            A("    s_getreg_b32 s52, hwreg(HW_REG_HW_ID)")
        A("    v_mov_b32 v4, s50\n    v_mov_b32 v5, s52\n    v_mov_b32 v6, s54\n    v_mov_b32 v7, s56")
        A("    s_lshl_b32 s48, s48, 4")
        A("    v_mov_b32 v3, 0")
        A("    s_mov_b64 exec, 1")
        A("    buffer_store_dwordx4 v[4:7], v3, s[44:47], s48 offen")
        if stamps == 3:
            A("    s_lshl_b32 s48, s48, 2")
            A("    s_add_u32 s48, s48, 0x100000")
            for k in range(16):
                src = (60 + 2 * k) if (k % 8) < I else 50
                A(f"    v_mov_b32 v{16+k}, s{src}")
            for k in range(4):
                A(f"    buffer_store_dwordx4 v[{16+4*k}:{19+4*k}], v3, s[44:47], s48 offen offset:{16*k}")
    A("L_done:")
    A("    s_endpgm")
    nv = max(F + 2 * npk + (4 if dum else 0), vg)
    A('.section .rodata,"a"')
    A(".p2align 6")
    A(f".amdhsa_kernel {NAME}")
    A(f"  .amdhsa_next_free_vgpr {nv}")
    A(f"  .amdhsa_next_free_sgpr {96 if stamps else 48}")
    A(f"  .amdhsa_accum_offset {(min(nv,256)+3)//4*4}")
    A("  .amdhsa_group_segment_fixed_size 0")
    A("  .amdhsa_kernarg_size 48")
    A("  .amdhsa_user_sgpr_count 2")
    A("  .amdhsa_user_sgpr_kernarg_segment_ptr 1")
    A("  .amdhsa_system_sgpr_workgroup_id_x 1")
    A("  .amdhsa_float_denorm_mode_32 3")
    A(".end_amdhsa_kernel")
    return "\n".join(L) + "\n"


def parse(sp):
    kw = {}
    for kv in sp.split(","):
        k, v = kv.split("=")
        if k in ("ld", "st"):
            kw[k] = (" " + v.replace("+", " ")) if v else ""
        else:
            kw[k] = int(v)
    return kw


if __name__ == "__main__":
    import os, json, subprocess
    outdir = sys.argv[1]
    os.makedirs(outdir, exist_ok=True)
    names = []
    for sp in sys.argv[2:]:
        fn = "k_" + sp.replace("=", "").replace(",", "_").replace("+", "") + ".s"
        open(f"{outdir}/{fn}", "w").write(gen(**parse(sp)))
        names.append(fn)
    r = subprocess.run(["python", "build.py"] + names, cwd=outdir, capture_output=True, text=True)
    if r.returncode:
        print(r.stdout, r.stderr); sys.exit(1)
    open(f"{outdir}/list.txt", "w").write(r.stdout)
    rel = os.path.relpath(os.path.abspath(outdir), "code")
    print(json.dumps(["gen/bench", f"{rel}/list.txt"] + [f"{rel}/" + x.split(":")[0] for x in r.stdout.split()]))
    print(json.dumps([f"{rel}/" + n for n in names]))
```

```python
import sys
sys.path.insert(0,'.')
from gen2 import gen
src = gen(lpr=64, waves=8, nwg=256, P=1, loc=0)
src = src.replace("    s_load_dwordx4 s[4:7], s[0:1], 0 ", "    s_memrealtime s[50:51]\n    s_load_dwordx4 s[4:7], s[0:1], 0 ")
probe = """
    s_waitcnt vmcnt(0)
    s_cmp_lg_u32 s2, 0
    s_cbranch_scc1 L_done
    v_readfirstlane_b32 s60, v0
    s_cmp_lg_u32 s60, 0
    s_cbranch_scc1 L_done
    s_load_dwordx2 s[44:45], s[0:1], 32
    s_mov_b32 s46, 256
    s_mov_b32 s47, 0x20000
    s_mov_b32 s61, 10
L_w:
    s_sleep 64
    s_sub_u32 s61, s61, 1
    s_cmp_lg_u32 s61, 0
    s_cbranch_scc1 L_w
    s_waitcnt lgkmcnt(0)
    s_mov_b64 exec, 1
    v_mov_b32 v2, 0
    s_getreg_b32 s60, hwreg(HW_REG_XCC_ID, 0, 3)
"""
def lat(srd, off, acc, sign):
    return f"""
    s_memtime s[64:65]
    s_waitcnt lgkmcnt(0)
    buffer_load_dword v3, v2, s[{srd}:{srd+3}], {off} offen nt
    s_waitcnt vmcnt(0)
    s_memtime s[66:67]
    s_waitcnt lgkmcnt(0)
    s_sub_u32 s66, s66, s64
    s_min_u32 s66, s66, 2000
    s_{sign}_u32 {acc}, {acc}, s66
"""
for bi,(srd,res) in enumerate(((12,80),(28,81))):
    probe += f"""
    s_mov_b32 s70, 0
    s_mov_b32 s{res}, 0
L_p{bi}:
    s_lshl_b32 s72, s70, 21
    s_add_u32 s72, s72, 0x4000     ; a pair another workgroup (other XCD) handled
    s_add_u32 s73, s72, 0x9000
""" + lat(srd,"s73","s75","add") + f"""
    s_mov_b32 s74, 0x100000
"""
    for k in range(3):
        probe += f"    s_add_u32 s73, s72, {k*512}\n" + lat(srd,"s73","s74","add")
        probe += f"    s_add_u32 s73, s72, {8192+k*512}\n" + lat(srd,"s73","s74","sub")
    probe += f"""
    s_cmp_gt_u32 s74, 0x100000
    s_cselect_b32 s74, 1, 0
    s_xor_b32 s74, s74, s70
    s_lshr_b32 s76, s60, 2
    s_xor_b32 s74, s74, s76
    s_and_b32 s74, s74, 1
    s_lshl_b32 s74, s74, s70
    s_or_b32 s{res}, s{res}, s74
    s_add_u32 s70, s70, 1
    s_cmp_lt_u32 s70, 16
    s_cbranch_scc1 L_p{bi}
"""
probe += """
    v_mov_b32 v4, s80
    v_mov_b32 v5, s81
    v_mov_b32 v6, s60
    v_mov_b32 v7, s28
    buffer_store_dwordx4 v[4:7], v2, s[44:47], 0 offen offset:0
    s_mov_b32 s82, s60
    s_and_b32 s83, s28, 0x1fffff
    s_cselect_b32 s83, 8, 0
    s_add_u32 s82, s82, s83
    s_and_b32 s83, s12, 0x1fffff
    s_cselect_b32 s83, 16, 0
    s_add_u32 s82, s82, s83
    s_cmp_lg_u32 s80, 0
    s_cselect_b32 s83, 32, 0
    s_add_u32 s82, s82, s83
    s_cmp_eq_u32 s80, 0xffff
    s_cselect_b32 s83, 32, 0
    s_add_u32 s82, s82, s83
    s_cmp_lg_u32 s81, 0
    s_cselect_b32 s83, 96, 0
    s_add_u32 s82, s82, s83
    s_cmp_eq_u32 s81, 0xffff
    s_cselect_b32 s83, 96, 0
    s_add_u32 s82, s82, s83
    s_mul_i32 s82, s82, 500
    s_add_u32 s82, s82, 30000
L_fin:
    s_sleep 2
    s_memrealtime s[64:65]
    s_waitcnt lgkmcnt(0)
    s_sub_u32 s64, s64, s50
    s_cmp_lt_u32 s64, s82
    s_cbranch_scc1 L_fin
"""
src = src.replace("L_done:\n", probe + "L_done:\n").replace("next_free_sgpr 48", "next_free_sgpr 96")
for i in range(6):
    open(f"../h/diag_t{i}.s","w").write(src)
```

```python
import sys

HEADER = """; Kernarg layout for this problem (48 bytes, ptrs only, base s[0:1]):
;   offset   0: d_in[0] x  shape=(32, 512, 32, 32) dtype=bfloat16 strides=(1048576, 2048, 64, 2) contiguous=True
;   offset   8: d_in[1] g  shape=(512,) dtype=bfloat16 strides=(2,) contiguous=True
;   offset  16: d_in[2] b  shape=(512,) dtype=bfloat16 strides=(2,) contiguous=True
;   offset  24: d_out     shape=(32, 512, 32, 32) dtype=bfloat16 (2 bytes/elem)
"""
NAME = "standalone__instancenorm__sampling_kernel"
MB4 = 4 << 20


def gen(ld=" nt", st=" sc1", R0=2, tp=0, stamps=0, hold=0, dbg=0, order="B", fixk=-1, alt=1, tmo=16,
        win=16, wtmo=16, fearly=1, P0=2, noflag=0, warm=0, nl=8, fl=' sc1', stry=1, searly=0):
    L = []
    A = L.append
    I = 8
    nwg = 256
    A(HEADER + f"; @launch grid=({nwg},1,1) block=(512,1,1) lds=0")
    A('.amdgcn_target "amdgcn-amd-amdhsa--gfx950"')
    A(".text")
    A(f".globl {NAME}")
    A(".p2align 8")
    A(f".type {NAME},@function")
    A(f"{NAME}:")
    if stamps:
        A("    s_memrealtime s[50:51]")
        A("    s_load_dwordx2 s[44:45], s[0:1], 40")
    A("    s_load_dwordx4 s[4:7], s[0:1], 0       ; x, g")
    A("    s_load_dwordx4 s[8:11], s[0:1], 16     ; b, out")
    A("    s_load_dwordx2 s[16:17], s[0:1], 32    ; d_debug")
    A(f"    s_cmp_ge_u32 s2, {nwg}")
    A("    s_cbranch_scc1 L_done")
    A("    v_readfirstlane_b32 s20, v0")
    A("    v_and_b32 v2, 63, v0")
    A("    v_lshlrev_b32 v2, 4, v2")
    A("    s_lshr_b32 s20, s20, 6")
    if stamps:
        A("    s_mov_b32 s46, 0x10000000")
        A("    s_mov_b32 s47, 0x20000")
        A("    s_lshl_b32 s48, s2, 3")
        A("    s_add_u32 s48, s48, s20")
    A("    s_lshl_b32 s32, s2, 14")
    A("    s_lshl_b32 s21, s20, 11")
    A("    s_add_u32 s32, s32, s21")
    for it in range(1, R0):
        if alt and (it & 1):
            A(f"    s_xor_b32 s{32+it}, s32, 8192")
            A(f"    s_add_u32 s{32+it}, s{32+it}, {it*MB4}")
        else:
            A(f"    s_add_u32 s{32+it}, s32, {it*MB4}")
    A("    s_lshr_b32 s24, s2, 3")
    A("    s_lshl_b32 s24, s24, 7")
    A("    s_and_b32 s24, s24, 0x3ff              ; byte offset of the group's first channel")
    A("    v_lshrrev_b32 v1, 3, v2                ; lane*2")
    A("    v_add_u32 v1, s24, v1")
    A("    s_mov_b32 s14, 0x2000000")
    A("    s_mov_b32 s15, 0x20000")
    A("    s_mov_b32 s18, 256")
    A("    s_mov_b32 s19, 0x20000")
    A("    s_mov_b32 s30, 0x2000000")
    A("    s_mov_b32 s31, 0x20000")
    A("    s_mov_b32 s25, 0x3f803f80              ; bf16 (1.0, 1.0)")
    A("    s_mov_b32 s26, 0xffff0000")
    A("    v_mov_b32 v4, 0xba800000               ; -1/1024")
    A("    v_mov_b32 v5, 0x3727c5ac               ; 1e-5")
    A("    v_mov_b32 v3, 0")
    A("    s_getreg_b32 s3, hwreg(HW_REG_XCC_ID, 0, 3)")
    A("    s_mov_b32 s43, -1")
    A("    s_lshr_b32 s22, s2, 3")
    A("    s_add_u32 s22, s22, s2")
    A("    s_mul_i32 s22, s22, 0x6100             ; probe lines: every other leader tries the upper half first")
    A(f"    s_add_u32 s22, s22, {7*MB4}")
    A("    s_xor_b32 s23, s22, 8192")
    A("    s_lshl_b32 s27, s20, 8")
    A("    s_or_b32 s27, s27, s2")
    A(f"    s_cmp_ge_u32 s27, {nl}")
    A("    s_waitcnt lgkmcnt(0)")
    if not noflag:
        A("    s_cbranch_scc1 L_np")
        A("    s_load_dword s42, s[4:5], s22")
        A("    s_load_dword s43, s[4:5], s23")
        A("L_np:")
    A("    s_mov_b32 s12, s4")
    A("    s_mov_b32 s13, s5")
    nbuf = max(2, P0)
    DATA = 16
    F = DATA + nbuf * 8
    ops = []

    def buf(it):
        return DATA + (it % nbuf) * 8

    def load(it, u):
        b = buf(it) + 4 * u
        A(f"    buffer_load_dwordx4 v[{b}:{b+3}], v2, s[12:15], s{32+it} offen offset:{u*1024}{ld}")
        ops.append(("l", it, u))

    def wait(tag):
        n = len(ops) - 1 - ops.index(tag)
        A(f"    s_waitcnt vmcnt({n})")

    if warm & 1:
        A("    buffer_load_dword v9, v3, s[16:19], 0 offen offset:128 nt")
        ops.append(("w",))
    load(0, 0); load(0, 1)
    if warm & 2:
        A("    buffer_load_dword v9, v3, s[16:19], 0 offen offset:128 nt")
        ops.append(("w",))
    A("    global_load_ushort v14, v1, s[6:7]")
    A("    global_load_ushort v15, v1, s[8:9]     ; b")
    ops.append(("g",)); ops.append(("b",))
    for it in range(1, min(P0, R0)):
        load(it, 0); load(it, 1)
    A("    s_mov_b32 s28, s10")
    A("    s_mov_b32 s29, s11")
    if warm & 4:
        A("    s_sub_u32 s21, s27, 256")
        A(f"    s_cmp_ge_u32 s21, {nl}")
        A("    s_cbranch_scc1 L_nw")
        A("    s_load_dword s43, s[16:17], 192")
        A("L_nw:")
    if not noflag:
        A(f"    s_cmp_ge_u32 s27, {nl}")
        A("    s_cbranch_scc1 L_work")
        A("    s_lshr_b32 s24, s22, 11")
        A("    s_and_b32 s24, s24, 4")
        A("    s_and_b32 s21, s3, 3")
        A("    s_or_b32 s24, s24, s21                 ; this workgroup's slot if the first line is the close one")
        A("    s_sub_u32 s24, s24, s2")
        A("    s_and_b32 s24, s24, 7")
        A("    s_or_b32 s24, s24, 8")
        if fixk >= 0:
            A(f"    s_mov_b32 s24, {8|fixk}")
        A("    s_mov_b32 s22, s24")
        A("    s_mov_b32 s23, 0")
        A("    s_mov_b32 s21, 0")
        A(f"    s_waitcnt lgkmcnt(1)                   ; first line is here: does the second stay away for a while?")
        for _ in range(win):
            A("    s_cmp_eq_u32 s43, -1")
            A("    s_addc_u32 s21, s21, 0")
        A(f"    s_cmp_lt_u32 s21, {win}")
        A("    s_cbranch_scc1 L_unsure")
        A("    s_atomic_cmpswap s[22:23], s[16:17], 0x0" + (" glc" if stamps == 1 else ""))
        A("L_unsure:")
        if stamps == 1:
            A("    s_memrealtime s[60:61]")
            A("    s_waitcnt lgkmcnt(0)")
            A("    s_memrealtime s[62:63]")
        A("    s_waitcnt lgkmcnt(0)")
        if dbg:
            A("    s_lshl_b32 s21, s21, 8")
            A("    s_or_b32 s21, s21, s24")
            A("    v_mov_b32 v9, s21")
            A("    s_lshl_b32 s21, s2, 2")
            A("    s_mov_b64 exec, 1")
            A("    buffer_store_dword v9, v3, s[16:19], s21 offen offset:192")
            A("    s_mov_b64 exec, -1")
        A("L_work:")

    def flagload():
        A(f"    buffer_load_dword v1, v3, s[16:19], 0 offen{fl}")
        ops.append(("f",))

    def getflag(lbl):
        if stamps == 1:
            A("    s_memrealtime s[52:53]")
        if noflag:
            A(f"    s_mov_b32 s22, {8|max(fixk,0)}")
        else:
            if ("f",) in ops:
                wait(("f",))
                A("    v_readfirstlane_b32 s22, v1")
                A("    s_cmp_lg_u32 s22, 0")
                A(f"    s_cbranch_scc1 {lbl}_ok")
            if stry:
                if not searly:
                    A("    s_load_dword s22, s[16:17], 0x0")
                A("    s_waitcnt lgkmcnt(0)")
                A("    s_cmp_lg_u32 s22, 0")
                A(f"    s_cbranch_scc1 {lbl}_ok")
            A(f"    s_mov_b32 s23, {wtmo}")
            A(f"{lbl}:")
            A(f"    buffer_load_dword v1, v3, s[16:19], 0 offen{fl}")
            A("    s_waitcnt vmcnt(0)")
            A("    v_readfirstlane_b32 s22, v1")
            A("    s_cmp_lg_u32 s22, 0")
            A(f"    s_cbranch_scc1 {lbl}_ok")
            A("    s_sub_u32 s23, s23, 1")
            A("    s_cmp_lg_u32 s23, 0")
            A(f"    s_cbranch_scc1 {lbl}")
            A("    v_mov_b32 v10, 8")
            A("    v_mov_b32 v11, 0")
            A("    s_mov_b64 exec, 1")
            A("    buffer_atomic_cmpswap v[10:11], v3, s[16:19], 0 offen sc0 sc1")
            A("    s_waitcnt vmcnt(0)")
            A("    v_readfirstlane_b32 s22, v10")
            A("    s_mov_b64 exec, -1")
            A("    s_max_u32 s22, s22, 8")
            A(f"{lbl}_ok:")
        if stamps == 1:
            A("    s_memrealtime s[54:55]")
        A("    s_add_u32 s22, s22, s2")
        A("    s_lshr_b32 s23, s2, 3")
        A(f"    s_lshl_b32 s{32+R0}, s23, 17")
        A("    s_lshr_b32 s23, s23, 2")
        A("    s_xor_b32 s23, s23, s22")
        A("    s_and_b32 s23, s23, 4")
        A("    s_and_b32 s22, s22, 3")
        A("    s_lshl_b32 s22, s22, 4")
        A("    s_or_b32 s22, s22, s23")
        A("    s_and_b32 s23, s20, 4")
        A("    s_add_u32 s23, s23, s20")
        A("    s_and_b32 s23, s23, 11                 ; ... + (w>>2)*8 + (w&3)")
        A("    s_or_b32 s22, s22, s23")
        A("    s_lshl_b32 s22, s22, 11")
        A(f"    s_add_u32 s{32+R0}, s{32+R0}, s22")
        A(f"    s_add_u32 s{32+R0}, s{32+R0}, {R0*MB4}")
        load(R0, 0); load(R0, 1)
        for it in range(R0 + 1, I):
            A(f"    s_add_u32 s{32+it}, s{32+R0}, {(it-R0)*MB4}")

    def dpp(reg, ctl):
        A(f"    v_add_f32_dpp v{reg}, v{reg}, v{reg} {ctl}")

    RED = ["row_ror:8 row_mask:0xf bank_mask:0xf", "row_ror:4 row_mask:0xf bank_mask:0xf",
           "row_ror:2 row_mask:0xf bank_mask:0xf", "row_ror:1 row_mask:0xf bank_mask:0xf",
           "row_bcast:15 row_mask:0xa bank_mask:0xf", "row_bcast:31 row_mask:0xc bank_mask:0xf"]

    nst = [0]
    for it in range(I):
        b = buf(it)
        A("    v_mov_b32 v6, 0")
        A("    v_mov_b32 v7, 0")
        newp = it <= R0 and (it == 0 or alt or it == R0)
        if newp:
            A(f"    s_bfe_u32 s21, s{32+it}, 0x6000b       ; row in group = lane that holds its g / b")
        nxt = it + 1
        pre = nxt < I and ("l", nxt, 0) not in ops and nxt != R0
        for u in range(2):
            wait(("l", it, u))
            if pre:
                load(nxt, u)
            if stamps == 3 and u == 1:
                A(f"    s_memrealtime s[{60+2*it}:{61+2*it}]")
            if stamps == 3 and u == 1 and it == 0:
                A("    s_memrealtime s[52:53]")
            if stamps == 3 and u == 1 and it == I - 1:
                A("    s_memrealtime s[54:55]")
            if order == "A" and nxt == R0 and u == 1:
                getflag("L_flag")
            if order == "B" and nxt == R0 and u == 1 and fearly and not noflag:
                flagload()
            for j in range(4):
                A(f"    v_dot2c_f32_bf16 v{6+(j&1)}, s25, v{b+4*u+j}")
        unp = []
        for k in range(8):
            unp.append(f"    v_lshlrev_b32 v{F+2*k}, 16, v{b+k}")
            unp.append(f"    v_and_b32 v{F+2*k+1}, s26, v{b+k}")
        for _ in range(3): A(unp.pop(0))
        A("    v_add_f32 v6, v6, v7")
        for ctl in RED:
            A(unp.pop(0)); A(unp.pop(0))
            dpp(6, ctl)
        A(unp.pop(0))
        A("    v_readlane_b32 s42, v6, 63")
        if newp:
            if it == 0:
                wait(("b",))
            A("    v_readlane_b32 s40, v14, s21")
            A("    v_readlane_b32 s41, v15, s21")
        else:
            A("    s_nop 1")
        A("    v_cvt_pk_bf16_f32 v6, 0, s42")
        if newp:
            A("    s_lshl_b32 s40, s40, 16")
            A("    s_lshl_b32 s41, s41, 16")
        for k in range(8):
            f = F + 2 * k
            A(f"    v_pk_fma_f32 v[{f}:{f+1}], v[6:7], v[4:5], v[{f}:{f+1}] op_sel_hi:[0,0,1]   ; x - mean")
        for k in range(8):
            f = F + 2 * k
            a = 8 + 2 * (k & 1)
            if k < 2:
                A(f"    v_pk_mul_f32 v[{a}:{a+1}], v[{f}:{f+1}], v[{f}:{f+1}]")
            else:
                A(f"    v_pk_fma_f32 v[{a}:{a+1}], v[{f}:{f+1}], v[{f}:{f+1}], v[{a}:{a+1}]")
        if searly == 2 and it + 2 == R0 and not noflag:
            A("    s_load_dword s22, s[16:17], 0x0")
        A("    v_pk_add_f32 v[8:9], v[8:9], v[10:11]")
        A("    v_add_f32 v8, v8, v9")
        for ctl in RED:
            A("    s_nop 1")
            dpp(8, ctl)
        A("    s_nop 0")
        A("    v_readlane_b32 s42, v8, 63")
        A(f"    v_mov_b32 v13, s41")
        A("    s_nop 0")
        A("    v_cvt_pk_bf16_f32 v8, 0, s42")
        A("    v_fma_f32 v8, v8, -v4, v5              ; var + 1e-5")
        A("    v_cvt_pk_bf16_f32 v8, 0, v8")
        A("    v_sqrt_f32 v8, v8")
        A("    s_nop 0")
        A("    v_cvt_pk_bf16_f32 v8, 0, v8")
        A("    v_rcp_f32 v8, v8")
        A("    s_nop 0")
        A(f"    v_mul_f32 v12, s40, v8                 ; g / std")
        if order == "A" and it + 2 == R0 and fearly and not noflag:
            flagload()
        for u in range(2):
            for j in range(4):
                f = F + 2 * (4 * u + j)
                A(f"    v_pk_fma_f32 v[{f}:{f+1}], v[{f}:{f+1}], v[12:13], v[12:13] op_sel:[0,0,1] op_sel_hi:[1,0,1]")
            for j in range(4):
                k = 4 * u + j
                A(f"    v_cvt_pk_bf16_f32 v{b+k}, v{F+2*k}, v{F+2*k+1}")
            stf = "" if nst[0] >= 2 * I - tp else st
            A(f"    buffer_store_dwordx4 v[{b+4*u}:{b+4*u+3}], v2, s[28:31], s{32+it} offen offset:{u*1024}{stf}")
            ops.append(("s", it, u)); nst[0] += 1
        if searly == 1 and it + 2 == R0 and not noflag:
            A("    s_load_dword s22, s[16:17], 0x0")
        if stamps == 3:
            A(f"    s_memrealtime s[{76+2*it}:{77+2*it}]")
        if order == "B" and nxt == R0:
            getflag("L_flag")

    if stamps:
        A("    s_waitcnt vmcnt(0)")
        A("    s_memrealtime s[56:57]")
        A("    s_waitcnt lgkmcnt(0)")
        if hold:
            A(f"L_hold:\n    s_sleep 4\n    s_memrealtime s[58:59]\n    s_waitcnt lgkmcnt(0)\n    s_sub_u32 s58, s58, s50\n    s_cmp_lt_u32 s58, 1200\n    s_cbranch_scc1 L_hold")
        A("    v_mov_b32 v4, s50\n    v_mov_b32 v5, s52\n    v_mov_b32 v6, s54\n    v_mov_b32 v7, s56")
        A("    s_lshl_b32 s48, s48, 4")
        A("    v_mov_b32 v3, 0")
        A("    s_mov_b64 exec, 1")
        A("    buffer_store_dwordx4 v[4:7], v3, s[44:47], s48 offen")
        if stamps in (1, 3):
            A("    s_lshl_b32 s48, s48, 2")
            A("    s_add_u32 s48, s48, 0x100000")
            for k in range(16):
                A(f"    v_mov_b32 v{16+k}, s{60+2*k}")
            for k in range(4):
                A(f"    buffer_store_dwordx4 v[{16+4*k}:{19+4*k}], v3, s[44:47], s48 offen offset:{16*k}")
    A("L_done:")
    A("    s_endpgm")
    nv = F + 16
    A('.section .rodata,"a"')
    A(".p2align 6")
    A(f".amdhsa_kernel {NAME}")
    A(f"  .amdhsa_next_free_vgpr {nv}")
    A(f"  .amdhsa_next_free_sgpr {96 if stamps else 48}")
    A(f"  .amdhsa_accum_offset {(nv+3)//4*4}")
    A("  .amdhsa_group_segment_fixed_size 0")
    A("  .amdhsa_kernarg_size 48")
    A("  .amdhsa_user_sgpr_count 2")
    A("  .amdhsa_user_sgpr_kernarg_segment_ptr 1")
    A("  .amdhsa_system_sgpr_workgroup_id_x 1")
    A("  .amdhsa_float_denorm_mode_32 3")
    A(".end_amdhsa_kernel")
    return "\n".join(L) + "\n"


def parse(sp):
    kw = {}
    for kv in sp.split(","):
        if not kv: continue
        k, v = kv.split("=")
        if k in ("ld", "st", "poll", "fl"):
            kw[k] = (" " + v.replace("+", " ")) if v else ""
        elif k in ("order", "mode"):
            kw[k] = v
        else:
            kw[k] = int(v)
    return kw


if __name__ == "__main__":
    import os, json, subprocess
    outdir = sys.argv[1]
    os.makedirs(outdir, exist_ok=True)
    names = []
    for sp in sys.argv[2:]:
        fn = "g4_" + sp.replace("=", "").replace(",", "_").replace("+", "") + ".s"
        open(f"{outdir}/{fn}", "w").write(gen(**parse(sp)))
        names.append(fn)
    r = subprocess.run(["python", "build.py"] + names, cwd=outdir, capture_output=True, text=True)
    if r.returncode or r.stderr:
        print(r.stdout, r.stderr)
        if r.returncode: sys.exit(1)
    open(f"{outdir}/list.txt", "w").write(r.stdout)
    rel = os.path.relpath(os.path.abspath(outdir), "code")
    print(json.dumps(["gen/bench", f"{rel}/list.txt"] + [f"{rel}/" + x.split(":")[0] for x in r.stdout.split()]))
    print(json.dumps([f"{rel}/" + n for n in names]))
```

```python
import sys
sys.path.insert(0,'.')
from gen2 import gen
NAME = "standalone__instancenorm__sampling_kernel"
def enc(spacing, align, wg, lo=0, hi=15):
    src = gen(lpr=64, waves=8, nwg=256, P=1, loc=0)
    pro = ""
    for k in range(16):
        pro += f"    s_memtime s[{60+2*k}:{61+2*k}]\n" + "    s_nop 0\n" * ((spacing-8)//4)
    pro += "    s_memrealtime s[50:51]\n"
    src = src.replace(f"{NAME}:\n", f"{NAME}:\n" + pro, 1)
    src = src.replace(".p2align 8\n", f".p2align {align}\n", 1)
    tail = f"""
    s_waitcnt vmcnt(0)
    s_cmp_lg_u32 s2, {wg}
    s_cbranch_scc1 L_done
    v_readfirstlane_b32 s52, v0
    s_cmp_lg_u32 s52, 0
    s_cbranch_scc1 L_done
    s_mov_b32 s52, 0
    s_mov_b32 s53, 0
"""
    for k in range(lo, hi):
        tail += f"""    s_sub_u32 s54, s{62+2*k}, s{60+2*k}
    s_cmp_gt_u32 s54, s52
    s_cselect_b32 s52, s54, s52
    s_cselect_b32 s53, {k}, s53
"""
    tail += """
    s_lshr_b32 s52, s52, 7
    s_min_u32 s52, s52, 40
    s_lshl_b32 s52, s52, 4
    s_add_u32 s52, s52, s53
    s_mul_i32 s52, s52, 400
    s_add_u32 s52, s52, 10000
L_fin:
    s_sleep 2
    s_memrealtime s[54:55]
    s_waitcnt lgkmcnt(0)
    s_sub_u32 s54, s54, s50
    s_cmp_lt_u32 s54, s52
    s_cbranch_scc1 L_fin
"""
    return src.replace("L_done:\n", tail + "L_done:\n").replace("next_free_sgpr 48", "next_free_sgpr 96")
open("../h/d6_a12_lo.s","w").write(enc(64,12,3,0,6))
open("../h/d6_a12_mid.s","w").write(enc(64,12,3,6,10))
open("../h/d6_a12_hi.s","w").write(enc(64,12,3,10,15))
open("../h/d6_a12_128.s","w").write(enc(128,12,3,4,15))
open("../h/d6_a12_lo_wg6.s","w").write(enc(64,12,6,0,6))
open("../h/d6_a12_lo2.s","w").write(enc(64,12,3,0,3))
```

```python
import sys
sys.path.insert(0,'.')
from gen2 import gen
def mk(kind, p=0, extra=10000):
    src = gen(lpr=64, waves=8, nwg=256, P=1, loc=0)
    src = src.replace(".p2align 8\n", ".p2align 12\n", 1)
    src = src.replace("    s_load_dwordx4 s[4:7], s[0:1], 0 ", "    s_memrealtime s[50:51]\n    s_load_dwordx4 s[4:7], s[0:1], 0 ")
    if kind in ("warm", "cold"):
        src = src.replace("    s_mov_b32 s12, s4\n", "    s_memtime s[60:61]\n    s_waitcnt lgkmcnt(0)\n    s_load_dword s62, s[4:5], 0x7c000\n    s_waitcnt lgkmcnt(0)\n    s_memtime s[64:65]\n    s_waitcnt lgkmcnt(0)\n    s_sub_u32 s64, s64, s60\n    s_mov_b32 s12, s4\n", 1)
    tail = """
    s_waitcnt vmcnt(0)
    s_cmp_lg_u32 s2, 0
    s_cbranch_scc1 L_done
    v_readfirstlane_b32 s52, v0
    s_cmp_lg_u32 s52, 0
    s_cbranch_scc1 L_done
"""
    if kind == "rand":
        tail += f"""
    s_mul_i32 s52, s50, 0x9e3779b1
    s_lshr_b32 s52, s52, 22
    s_cmp_ge_u32 s52, {int(p*1024)}
    s_cbranch_scc1 L_done
"""
    elif kind == "warm":
        tail += "    s_cmp_ge_u32 s64, 450\n    s_cbranch_scc1 L_done\n"
    elif kind == "cold":
        tail += "    s_cmp_lt_u32 s64, 450\n    s_cbranch_scc1 L_done\n"
    tail += f"""
L_fin:
    s_sleep 2
    s_memrealtime s[54:55]
    s_waitcnt lgkmcnt(0)
    s_sub_u32 s54, s54, s50
    s_cmp_lt_u32 s54, {extra}
    s_cbranch_scc1 L_fin
"""
    return src.replace("L_done:\n", tail + "L_done:\n").replace("next_free_sgpr 48", "next_free_sgpr 96")
open("../h/d8_p10.s","w").write(mk("rand",0.10))
open("../h/d8_p25.s","w").write(mk("rand",0.25))
open("../h/d8_p40.s","w").write(mk("rand",0.40))
open("../h/d8_warm100.s","w").write(mk("warm"))
open("../h/d8_warm16.s","w").write(mk("warm",extra=1600))
open("../h/d8_cold100.s","w").write(mk("cold"))
```

```python
import sys

HEADER = """; Kernarg layout for this problem (48 bytes, ptrs only, base s[0:1]):
;   offset   0: d_in[0] x  shape=(32, 512, 32, 32) dtype=bfloat16 strides=(1048576, 2048, 64, 2) contiguous=True
;   offset   8: d_in[1] g  shape=(512,) dtype=bfloat16 strides=(2,) contiguous=True
;   offset  16: d_in[2] b  shape=(512,) dtype=bfloat16 strides=(2,) contiguous=True
;   offset  24: d_out     shape=(32, 512, 32, 32) dtype=bfloat16 (2 bytes/elem)
"""
NAME = "standalone__instancenorm__sampling_kernel"
MB4 = 4 << 20


def gen(rp=2, ld=" nt", st=" sc1", tp=0, dbg=0, fixk=-1, win=24, wtmo=256, noflag=0, nl=8, align=12, pad=0, gfirst=0, prio=0, pg=1, stamps=0, gw=0, gbar=0, wb=0, wbw=0):
    L = []
    A = L.append
    nwg = 256
    X, F, Y = 16, 24, 40
    A(HEADER + f"; @launch grid=({nwg},1,1) block=(512,1,1) lds=0")
    A('.amdgcn_target "amdgcn-amd-amdhsa--gfx950"')
    A(".text")
    A(f".globl {NAME}")
    if align > 8:
        A(f".p2align {align}")
        if pad:
            A(f".fill {pad//4}, 4, 0xbf810000")
    A(".p2align 8")
    A(f".type {NAME},@function")
    A(f"{NAME}:")
    if stamps:
        A("    s_memrealtime s[50:51]")
        A("    s_load_dwordx2 s[44:45], s[0:1], 40")
        A("    s_mov_b32 s46, 0x10000000")
        A("    s_mov_b32 s47, 0x20000")
    A("    s_load_dwordx2 s[12:13], s[0:1], 0     ; x")
    A("    s_load_dwordx4 s[4:7], s[0:1], 8       ; g, b")
    A("    s_load_dwordx4 s[8:11], s[0:1], 24")
    A("    v_readfirstlane_b32 s20, v0")
    A("    v_and_b32 v2, 63, v0")
    A(f"    s_cmp_ge_u32 s2, {nwg}")
    A("    s_cbranch_scc1 L_done")
    A("    v_lshlrev_b32 v1, 1, v2                ; lane*2")
    A("    v_lshlrev_b32 v2, 4, v2")
    A("    s_lshl_b32 s32, s2, 9")
    A("    s_add_u32 s32, s32, s20")
    A("    s_lshl_b32 s32, s32, 5")
    if stamps:
        A("    s_lshr_b32 s48, s32, 11")
    A("    s_mov_b32 s14, 0x2000000")
    A("    s_mov_b32 s15, 0x20000")
    if not noflag:
        if rp:
            A("    s_getreg_b32 s23, hwreg(HW_REG_HW_ID, 0, 16)")
            A("    s_lshr_b32 s22, s0, 3")
            A("    s_add_u32 s22, s22, s2")
            A("    s_lshl_b32 s23, s23, 16")
            A("    s_xor_b32 s22, s22, s23")
            A("    s_mul_i32 s22, s22, 0x9e3779b1")
            A("    s_lshr_b32 s22, s22, 7")
            A("    s_and_b32 s22, s22, 0x1dfdfc0")
            A("    s_lshl_b32 s23, s2, 13")
            A("    s_and_b32 s23, s23, 8192")
            A("    s_or_b32 s22, s22, s23                 ; odd leaders try the upper half first")
            if rp == 2:
                A("    s_or_b32 s22, s22, 0x1000000")
        else:
            A("    s_mul_i32 s22, s2, 0x6100              ; probe lines: odd leaders try the upper half first")
            A(f"    s_add_u32 s22, s22, {7*MB4}")
        A("    s_xor_b32 s23, s22, 8192")
        A("    s_mov_b32 s19, -1")
        A("    s_lshl_b32 s27, s20, 2")
        A(f"    s_or_b32 s27, s27, s2                  ; < {nl}: wave 0 of the first workgroups")
        A(f"    s_cmp_ge_u32 s27, {nl}")
    A("    s_waitcnt lgkmcnt(0)")
    if not noflag:
        A("    s_cbranch_scc1 L_np")
        A("    s_load_dword s18, s[12:13], s22" + (" glc" if pg else ""))
        A("    s_load_dword s19, s[12:13], s23" + (" glc" if pg else ""))
        A("L_np:")
    A(f"    buffer_load_dwordx4 v[{X}:{X+3}], v2, s[12:15], s32 offen{ld}")
    A(f"    buffer_load_dwordx4 v[{X+4}:{X+7}], v2, s[12:15], s32 offen offset:1024{ld}")
    A("    s_lshl_b32 s24, s2, 4")
    A("    s_and_b32 s24, s24, 0x380              ; byte offset of the first channel of this group of 8 workgroups")
    A("    v_add_u32 v1, s24, v1")
    if gbar:
        A("    s_barrier")
    A("    global_load_ushort v14, v1, s[4:5]")
    A("    global_load_ushort v15, v1, s[6:7]     ; b")
    A("    s_xor_b32 s33, s32, 8192")
    A(f"    s_add_u32 s33, s33, {MB4}")
    A("    s_mov_b32 s28, s8")
    A("    s_mov_b32 s29, s9")
    A("    s_mov_b32 s30, 0x2000000")
    A("    s_mov_b32 s31, 0x20000")
    A("    s_mov_b32 s25, 0x3f803f80              ; bf16 (1.0, 1.0)")
    A("    s_mov_b32 s26, 0xffff0000")
    A("    v_mov_b32 v4, 0xba800000               ; -1/1024")
    A("    v_mov_b32 v5, 0x3727c5ac               ; 1e-5")
    A("    v_mov_b32 v3, 0")
    if not noflag:
        A(f"    s_cmp_ge_u32 s27, {nl}")
        A("    s_cbranch_scc1 L_work")
        A("    s_getreg_b32 s21, hwreg(HW_REG_XCC_ID, 0, 2)")
        A("    s_lshr_b32 s34, s22, 11")
        A("    s_and_b32 s34, s34, 4")
        A("    s_or_b32 s34, s34, s21                 ; this workgroup's slot if the first line is the close one")
        A("    s_sub_u32 s34, s34, s2")
        A("    s_and_b32 s34, s34, 7")
        A("    s_or_b32 s34, s34, 8")
        if fixk >= 0:
            A(f"    s_mov_b32 s34, {8|fixk}")
        A("    s_mov_b32 s35, 0")
        A("    s_xor_b32 s36, s34, 4")
        A("    s_mov_b32 s37, 0")
        A("    s_waitcnt lgkmcnt(1)                   ; first line is here: does the second stay away for a while?")
        for _ in range(win // 16): A("    s_nop 15")
        if win % 16: A(f"    s_nop {win % 16 - 1}")
        A("    s_cmp_eq_u32 s19, -1")
        if dbg:
            A("    s_cselect_b32 s38, 256, 0")
        A(f"    s_cbranch_scc0 {'L_unsure' if dbg else 'L_work'}")
        A("    s_atomic_cmpswap s[34:35], s[10:11], 0x0")
        A("    s_mov_b32 s36, s34")
        if dbg:
            A("L_unsure:")
            A("    s_or_b32 s38, s38, s36")
            A("    v_mov_b32 v9, s38")
            A("    s_lshl_b32 s21, s2, 2")
            A("    v_mov_b32 v8, s21")
            A("    global_store_dword v8, v9, s[10:11] offset:192")
        A("L_work:")
    if not gw:
        A("    s_waitcnt vmcnt(0)")

    def dpp(reg, ctl):
        A(f"    v_add_f32_dpp v{reg}, v{reg}, v{reg} {ctl}")

    RED = ["row_ror:8 row_mask:0xf bank_mask:0xf", "row_ror:4 row_mask:0xf bank_mask:0xf",
           "row_ror:2 row_mask:0xf bank_mask:0xf", "row_ror:1 row_mask:0xf bank_mask:0xf",
           "row_bcast:15 row_mask:0xa bank_mask:0xf", "row_bcast:31 row_mask:0xc bank_mask:0xf"]

    def unp(k):
        return [f"    v_lshlrev_b32 v{F+2*k}, 16, v{X+k}", f"    v_and_b32 v{F+2*k+1}, s26, v{X+k}"]

    A("L_loop:")
    A("    v_mov_b32 v6, 0")
    A("    v_mov_b32 v7, 0")
    A("    s_bfe_u32 s21, s32, 0x6000b            ; row in group = lane that holds its g / b")
    A("    s_waitcnt vmcnt(3)")
    for j in range(4):
        A(f"    v_dot2c_f32_bf16 v{6+(j&1)}, s25, v{X+j}")
    for k in range(4):
        for q in unp(k): A(q)
    A(f"    buffer_load_dwordx4 v[{X}:{X+3}], v2, s[12:15], s33 offen{ld}")
    A("    s_waitcnt vmcnt(3)")
    if stamps:
        A("    s_memrealtime s[52:53]")
    for j in range(4):
        A(f"    v_dot2c_f32_bf16 v{6+(j&1)}, s25, v{X+4+j}")
    u = [q for k in range(4, 8) for q in unp(k)]
    for _ in range(3): A(u.pop(0))
    A("    v_add_f32 v6, v6, v7")
    A(u.pop(0)); A(u.pop(0)); dpp(6, RED[0])
    A(u.pop(0)); A(u.pop(0)); dpp(6, RED[1])
    A(u.pop(0))
    A(f"    buffer_load_dwordx4 v[{X+4}:{X+7}], v2, s[12:15], s33 offen offset:1024{ld}")
    dpp(6, RED[2])
    if not gw:
        A("    v_readlane_b32 s40, v14, s21")
        A("    v_readlane_b32 s41, v15, s21")
        dpp(6, RED[3])
        A("    s_lshl_b32 s40, s40, 16")
        A("    s_lshl_b32 s41, s41, 16")
        dpp(6, RED[4])
        A("    v_mov_b32 v13, s41")
        A("    s_nop 0")
        dpp(6, RED[5])
    else:
        for c in RED[3:]:
            A("    s_nop 1")
            dpp(6, c)
    A("    s_nop 0")
    A("    v_readlane_b32 s42, v6, 63")
    A("    s_nop 1")
    A("    v_cvt_pk_bf16_f32 v6, 0, s42")
    for k in range(8):
        f = F + 2 * k
        A(f"    v_pk_fma_f32 v[{f}:{f+1}], v[6:7], v[4:5], v[{f}:{f+1}] op_sel_hi:[0,0,1]   ; x - mean")
    for k in range(8):
        f = F + 2 * k
        a = 8 + 2 * (k & 1)
        if k < 2:
            A(f"    v_pk_mul_f32 v[{a}:{a+1}], v[{f}:{f+1}], v[{f}:{f+1}]")
        else:
            A(f"    v_pk_fma_f32 v[{a}:{a+1}], v[{f}:{f+1}], v[{f}:{f+1}], v[{a}:{a+1}]")
    A("    v_pk_add_f32 v[8:9], v[8:9], v[10:11]")
    A("    v_add_f32 v8, v8, v9")
    if not gw:
        for ctl in RED:
            A("    s_nop 1")
            dpp(8, ctl)
    else:
        fill = [["    s_nop 1"], ["    s_nop 1"], ["    s_nop 0", f"    s_cmp_lt_u32 s32, {MB4}"],
                ["    s_cbranch_scc1 L_gwait", "L_gback:", "    v_readlane_b32 s40, v14, s21", "    v_readlane_b32 s41, v15, s21"],
                ["    s_lshl_b32 s40, s40, 16", "    s_lshl_b32 s41, s41, 16"],
                ["    v_mov_b32 v13, s41", "    s_nop 0"]]
        for ctl, fl in zip(RED, fill):
            for q in fl: A(q)
            dpp(8, ctl)
    A("    s_nop 0")
    A("    v_readlane_b32 s42, v8, 63")
    A("    s_nop 1")
    A("    v_cvt_pk_bf16_f32 v8, 0, s42")
    A("    v_fma_f32 v8, v8, -v4, v5              ; var + 1e-5")
    A("    v_cvt_pk_bf16_f32 v8, 0, v8")
    A("    v_sqrt_f32 v8, v8")
    A("    s_nop 0")
    A("    v_cvt_pk_bf16_f32 v8, 0, v8")
    A("    v_rcp_f32 v8, v8")
    A("    s_nop 0")
    A("    v_mul_f32 v12, s40, v8                 ; g / std")
    for h in range(2):
        for j in range(4):
            f = F + 2 * (4 * h + j)
            A(f"    v_pk_fma_f32 v[{f}:{f+1}], v[{f}:{f+1}], v[12:13], v[12:13] op_sel:[0,0,1] op_sel_hi:[1,0,1]")
        for j in range(4):
            k = 4 * h + j
            A(f"    v_cvt_pk_bf16_f32 v{Y+k}, v{F+2*k}, v{F+2*k+1}")
        if not tp:
            A(f"    buffer_store_dwordx4 v[{Y+4*h}:{Y+4*h+3}], v2, s[28:31], s32 offen offset:{h*1024}{st}")
    if tp:
        A(f"    s_cmp_ge_u32 s32, {(8-tp)*MB4}")
        A("    s_cbranch_scc1 L_last")
        for h in range(2):
            A(f"    buffer_store_dwordx4 v[{Y+4*h}:{Y+4*h+3}], v2, s[28:31], s32 offen offset:{h*1024}{st}")
        A("L_st:")
    if stamps:
        A("    s_memrealtime s[54:55]")
        A("    s_lshr_b32 s56, s32, 22")
        A("    s_add_u32 s57, s56, 8")
        A("    s_waitcnt lgkmcnt(0)")
        A("    s_mov_b32 m0, s56")
        A("    v_writelane_b32 v48, s52, m0")
        A("    s_mov_b32 m0, s57")
        A("    v_writelane_b32 v48, s54, m0")
    A(f"    s_cmp_lt_u32 s32, {MB4}")
    A("    s_mov_b32 s32, s33")
    A("    s_cbranch_scc1 L_flag")
    A(f"    s_add_u32 s33, s33, {MB4}")
    A("    s_cmp_lt_u32 s32, s14")
    A("    s_cbranch_scc1 L_loop")
    if wb:
        if wb >= 2:
            A(f"    s_cmp_lg_u32 s20, {wbw + (wbw & 4)}")
            A("    s_cbranch_scc1 L_nowb")
        if wb == 3:
            A("    s_cmp_ge_u32 s2, 8")
            A("    s_cbranch_scc1 L_nowb")
        if wb == 4:
            A("    s_and_b32 s21, s2, 56")
            A("    s_cbranch_scc1 L_nowb")
        A("    buffer_wbl2 sc1")
        A("L_nowb:")
    if stamps:
        A("    s_waitcnt vmcnt(0)")
        A("    s_memrealtime s[56:57]")
        A("    s_waitcnt lgkmcnt(0)")
        A("L_hold:\n    s_sleep 4\n    s_memrealtime s[58:59]\n    s_waitcnt lgkmcnt(0)\n    s_sub_u32 s58, s58, s50\n    s_cmp_lt_u32 s58, 1200\n    s_cbranch_scc1 L_hold")
        A("    v_readlane_b32 s60, v48, 0")
        A("    v_mov_b32 v4, s50\n    v_mov_b32 v6, s52\n    v_mov_b32 v7, s56\n    v_mov_b32 v5, s60")
        A("    s_lshl_b32 s48, s48, 4")
        A("    v_lshrrev_b32 v2, 2, v2")
        A("    s_mov_b64 exec, 1")
        A("    buffer_store_dwordx4 v[4:7], v3, s[44:47], s48 offen")
        A("    s_lshl_b32 s48, s48, 2")
        A("    s_add_u32 s48, s48, 0x100000")
        A("    s_mov_b64 exec, 0xffff")
        A("    buffer_store_dword v48, v2, s[44:47], s48 offen")
    A("L_done:")
    A("    s_endpgm")
    if tp:
        A("L_last:")
        for h in range(2):
            A(f"    buffer_store_dwordx4 v[{Y+4*h}:{Y+4*h+3}], v2, s[28:31], s32 offen offset:{h*1024}")
        A("    s_branch L_st")
    if gw:
        A("L_gwait:")
        A("    s_waitcnt vmcnt(2)                     ; first row only: g and b")
        A("    s_branch L_gback")
    A("L_flag:")
    if noflag:
        A(f"    s_mov_b32 s22, {8|max(fixk,0)}")
    else:
        A("    s_load_dword s22, s[10:11], 0x0")
    A("    s_lshr_b32 s20, s20, 6                 ; w")
    A("    s_and_b32 s23, s20, 4")
    A("    s_add_u32 s23, s23, s20")
    A("    s_and_b32 s20, s23, 11                 ; (w>>2)*8 + (w&3)")
    A("    s_lshr_b32 s23, s2, 3")
    A("    s_lshl_b32 s33, s23, 6")
    A("    s_or_b32 s33, s33, s20")
    A("    s_lshr_b32 s24, s23, 2")
    if not noflag:
        A("    s_waitcnt lgkmcnt(0)")
        A("    s_cmp_eq_u32 s22, 0")
        A("    s_cbranch_scc1 L_slow")
    A("L_got:")
    A("    s_add_u32 s22, s22, s2")
    A("    s_xor_b32 s23, s24, s22")
    A("    s_and_b32 s23, s23, 4")
    A("    s_or_b32 s33, s33, s23")
    A("    s_and_b32 s22, s22, 3")
    A("    s_lshl_b32 s22, s22, 4")
    A("    s_or_b32 s33, s33, s22")
    A("    s_lshl_b32 s33, s33, 11")
    A(f"    s_add_u32 s33, s33, {2*MB4}")
    A("    s_branch L_loop")
    if not noflag:
        A("L_slow:")
        A(f"    s_cmp_ge_u32 s27, {nl}")
        A("    s_cbranch_scc1 L_poll0")
        A("    s_atomic_cmpswap s[36:37], s[10:11], 0x0   ; a leader offers its best guess; the first offer stands")
        A("L_poll0:")
        A(f"    s_movk_i32 s23, {wtmo}")
        A("L_poll:")
        A("    global_load_dword v1, v3, s[10:11] sc1")
        A("    s_waitcnt vmcnt(0)")
        A("    v_readfirstlane_b32 s22, v1")
        A("    s_cmp_lg_u32 s22, 0")
        A("    s_cbranch_scc1 L_got")
        A("    s_sub_u32 s23, s23, 1")
        A("    s_cmp_lg_u32 s23, 0")
        A("    s_cbranch_scc1 L_poll")
        A("    s_mov_b32 s22, 8")
        A("    s_atomic_cmpswap s[22:23], s[10:11], 0x0 glc")
        A("    s_waitcnt lgkmcnt(0)")
        A("    s_max_u32 s22, s22, 8")
        A("    s_branch L_got")
    nv = Y + 8 + (1 if stamps else 0)
    A('.section .rodata,"a"')
    A(".p2align 6")
    A(f".amdhsa_kernel {NAME}")
    A(f"  .amdhsa_next_free_vgpr {nv}")
    A(f"  .amdhsa_next_free_sgpr {64 if stamps else 48}")
    A(f"  .amdhsa_accum_offset {(nv+3)//4*4}")
    A("  .amdhsa_group_segment_fixed_size 0")
    A("  .amdhsa_kernarg_size 48")
    A("  .amdhsa_user_sgpr_count 2")
    A("  .amdhsa_user_sgpr_kernarg_segment_ptr 1")
    A("  .amdhsa_system_sgpr_workgroup_id_x 1")
    A("  .amdhsa_float_denorm_mode_32 3")
    A(".end_amdhsa_kernel")
    return "\n".join(L) + "\n"


def parse(sp):
    kw = {}
    for kv in sp.split(","):
        if not kv: continue
        k, v = kv.split("=")
        if k in ("ld", "st", "poll", "fl"):
            kw[k] = (" " + v.replace("+", " ")) if v else ""
        elif k in ("order", "mode"):
            kw[k] = v
        else:
            kw[k] = int(v, 0)
    return kw


if __name__ == "__main__":
    import os, json, subprocess
    outdir = sys.argv[1]
    os.makedirs(outdir, exist_ok=True)
    names = []
    for sp in sys.argv[2:]:
        fn = "g5_" + sp.replace("=", "").replace(",", "_").replace("+", "") + ".s"
        open(f"{outdir}/{fn}", "w").write(gen(**parse(sp)))
        names.append(fn)
    r = subprocess.run(["python", "build.py"] + names, cwd=outdir, capture_output=True, text=True)
    if r.returncode or r.stderr:
        print(r.stdout, r.stderr)
        if r.returncode: sys.exit(1)
    open(f"{outdir}/list.txt", "a").write(r.stdout)
    rel = os.path.relpath(os.path.abspath(outdir), "code")
    print(json.dumps(["gen/bench2", f"{rel}/list.txt"] + [f"{rel}/" + x.split(":")[0] for x in open(f"{outdir}/list.txt").read().split()]))
    print(json.dumps([f"{rel}/" + n for n in names]))
```

```python
import sys

HEADER = """; Kernarg layout for this problem (48 bytes, ptrs only, base s[0:1]):
;   offset   0: d_in[0] x  shape=(32, 512, 32, 32) dtype=bfloat16 strides=(1048576, 2048, 64, 2) contiguous=True
;   offset   8: d_in[1] g  shape=(512,) dtype=bfloat16 strides=(2,) contiguous=True
;   offset  16: d_in[2] b  shape=(512,) dtype=bfloat16 strides=(2,) contiguous=True
"""
NAME = "standalone__instancenorm__sampling_kernel"
MB2 = 2 << 20


def gen(rp=2, ld=" nt", st=" sc1", dbg=0, fixk=-1, win=24, wtmo=256, noflag=0, nl=8, align=12, stamps=0,
        mix=1, defer=1, tp=0, math=0, fpos=1, iw=0, pb=0, d1=0, d2=0):
    L = []
    A = L.append
    nwg = 256
    F, Y, X = 16, 32, 40
    A(HEADER + f"; @launch grid=({nwg},1,1) block=(256,1,1) lds=0")
    A('.amdgcn_target "amdgcn-amd-amdhsa--gfx950"')
    A(".text")
    A(f".globl {NAME}")
    if align > 8:
        A(f".p2align {align}")
    A(".p2align 8")
    A(f".type {NAME},@function")
    A(f"{NAME}:")
    if stamps:
        A("    s_memrealtime s[50:51]")
        A("    s_load_dwordx2 s[44:45], s[0:1], 40")
        A("    s_mov_b32 s46, 0x10000000")
        A("    s_mov_b32 s47, 0x20000")
    A("    s_load_dwordx2 s[12:13], s[0:1], 0     ; x")
    A("    s_load_dwordx4 s[4:7], s[0:1], 8       ; g, b")
    A("    s_load_dwordx4 s[8:11], s[0:1], 24")
    A("    v_readfirstlane_b32 s20, v0")
    A("    v_and_b32 v2, 63, v0")
    A(f"    s_cmp_ge_u32 s2, {nwg}")
    A("    s_cbranch_scc1 L_done")
    A("    v_lshlrev_b32 v2, 4, v2")
    A("    s_lshl_b32 s32, s2, 8")
    A("    s_add_u32 s32, s32, s20")
    A("    s_lshl_b32 s32, s32, 5")
    if stamps:
        A("    s_lshr_b32 s48, s32, 11")
    if mix:
        A("    s_lshl_b32 s21, s2, 10")
        A("    s_and_b32 s21, s21, 8192")
        A("    s_xor_b32 s32, s32, s21")
    A(f"    s_add_u32 s33, s32, {MB2}")
    A("    s_xor_b32 s33, s33, 8192")
    A(f"    s_add_u32 s34, s32, {2*MB2}")
    A("    s_mov_b32 s14, 0x2000000")
    A("    s_mov_b32 s15, 0x20000")
    if not noflag:
        if rp:
            A("    s_getreg_b32 s23, hwreg(HW_REG_HW_ID, 0, 16)")
            A("    s_lshr_b32 s22, s0, 3")
            A("    s_add_u32 s22, s22, s2")
            A("    s_lshl_b32 s23, s23, 16")
            A("    s_xor_b32 s22, s22, s23")
            A("    s_mul_i32 s22, s22, 0x9e3779b1")
            A("    s_lshr_b32 s22, s22, 7")
            A("    s_and_b32 s22, s22, 0x1dfdfc0")
            A("    s_lshl_b32 s23, s2, 13")
            A("    s_and_b32 s23, s23, 8192")
            A("    s_or_b32 s22, s22, s23                 ; odd leaders try the upper half first")
            if rp == 2:
                A("    s_or_b32 s22, s22, 0x1000000")
        else:
            A("    s_mul_i32 s22, s2, 0x6100              ; probe lines: odd leaders try the upper half first")
            A(f"    s_add_u32 s22, s22, {14*MB2}")
        A("    s_xor_b32 s23, s22, 8192")
        A("    s_mov_b32 s19, -1")
        A("    s_lshl_b32 s27, s20, 2")
        A(f"    s_or_b32 s27, s27, s2                  ; < {nl}: wave 0 of the first workgroups")
        A(f"    s_cmp_ge_u32 s27, {nl}")
    A("    s_waitcnt lgkmcnt(0)")
    if not noflag:
        A("    s_cbranch_scc1 L_np")
        A("    s_load_dword s18, s[12:13], s22 glc")
        A("    s_load_dword s19, s[12:13], s23 glc")
        A("L_np:")

    def load(k, h, s):
        b = X + 8 * k + 4 * h
        A(f"    buffer_load_dwordx4 v[{b}:{b+3}], v2, s[12:15], s{s} offen" + (f" offset:{h*1024}" if h else "") + ld)

    def pad():
        A("    buffer_load_dword v1, v2, s[12:15], s14 offen      ; out of range: stands in for a store in the counts")
        A("    buffer_load_dword v1, v2, s[12:15], s14 offen")

    def bar(bit):
        for _ in range(d1 if bit == 1 else d2):
            A("    s_nop 15")
        if pb & bit:
            A("    s_barrier                              ; rows return in issue order: every wave's earlier row goes first")
    load(0, 0, 32); pad(); load(0, 1, 32); bar(1); load(1, 0, 33); pad(); load(1, 1, 33); bar(2); load(2, 0, 34); pad()
    A("    s_mov_b32 s28, s8")
    A("    s_mov_b32 s29, s9")
    A("    s_mov_b32 s30, 0x2000000")
    A("    s_mov_b32 s31, 0x20000")
    A("    s_mov_b32 s25, 0x3f803f80              ; bf16 (1.0, 1.0)")
    A("    s_mov_b32 s26, 0xffff0000")
    A("    v_mov_b32 v4, 0xba800000               ; -1/1024")
    A("    v_mov_b32 v5, 0x3727c5ac               ; 1e-5")
    A("    v_mov_b32 v3, 0")
    A("    s_bitcmp0_b32 s20, 6")
    A("    s_cselect_b32 s24, 16, 0")
    if iw:
        A("    s_mov_b64 vcc, -1")
        A("    s_cmp_eq_u32 s20, 64")
        A("    s_cbranch_scc1 L_b1")
        A("    s_cmp_eq_u32 s20, 128")
        A("    s_cbranch_scc1 L_b2")
        A("L_ret:")
        A("    s_mov_b64 vcc, 0")
    if not noflag:
        A(f"    s_cmp_ge_u32 s27, {nl}")
        A("    s_cbranch_scc1 L_loop")
        A("    s_getreg_b32 s21, hwreg(HW_REG_XCC_ID, 0, 2)")
        A("    s_lshr_b32 s36, s22, 11")
        A("    s_and_b32 s36, s36, 4")
        A("    s_or_b32 s36, s36, s21                 ; this workgroup's slot if the first line is the close one")
        A("    s_sub_u32 s36, s36, s2")
        A("    s_and_b32 s36, s36, 7")
        A("    s_or_b32 s36, s36, 8")
        if fixk >= 0:
            A(f"    s_mov_b32 s36, {8|fixk}")
        A("    s_mov_b32 s37, 0")
        A("    s_xor_b32 s38, s36, 4")
        A("    s_mov_b32 s39, 0")
        A("    s_waitcnt lgkmcnt(1)                   ; first line is here: does the second stay away for a while?")
        for _ in range(win // 16): A("    s_nop 15")
        if win % 16: A(f"    s_nop {win % 16 - 1}")
        A("    s_cmp_eq_u32 s19, -1")
        if dbg:
            A("    s_cselect_b32 s21, 256, 0")
            A("    s_or_b32 s21, s21, s36")
            A("    v_mov_b32 v9, s21")
            A("    s_lshl_b32 s23, s2, 2")
            A("    v_mov_b32 v8, s23")
            A("    global_store_dword v8, v9, s[10:11] offset:192")
            A("    s_bitcmp1_b32 s21, 8")
        A("    s_cbranch_scc0 L_loop")
        A("    s_atomic_cmpswap s[36:37], s[10:11], 0x0")
        A("    s_mov_b32 s38, s36")

    def dpp(reg, ctl):
        A(f"    v_add_f32_dpp v{reg}, v{reg}, v{reg} {ctl}")

    RED = ["row_ror:8 row_mask:0xf bank_mask:0xf", "row_ror:4 row_mask:0xf bank_mask:0xf",
           "row_ror:2 row_mask:0xf bank_mask:0xf", "row_ror:1 row_mask:0xf bank_mask:0xf",
           "row_bcast:15 row_mask:0xa bank_mask:0xf", "row_bcast:31 row_mask:0xc bank_mask:0xf"]

    def body(k):
        cur, n2 = 32 + k, 32 + (k + 2) % 3
        b = X + 8 * k
        if iw and k:
            A(f"L_b{k}:")
            A("    s_cbranch_vccnz L_ret")
        A(f"    s_lshr_b32 s21, s{cur}, 10")
        A("    s_and_b32 s21, s21, 0x3fc")
        A("    s_load_dword s40, s[4:5], s21")
        A("    s_load_dword s41, s[6:7], s21          ; b")
        A(f"    s_add_u32 s35, s{n2}, {MB2}")
        A("    s_xor_b32 s35, s35, 8192               ; row + 3")
        A("    v_mov_b32 v6, 0")
        A("    v_mov_b32 v7, 0")
        A("    s_waitcnt vmcnt(10)")
        load((k + 2) % 3, 1, n2)
        for j in range(4):
            A(f"    v_dot2c_f32_bf16 v{6+(j&1)}, s25, v{b+j}")
        for q in range(4):
            A(f"    v_lshlrev_b32 v{F+2*q}, 16, v{b+q}")
            A(f"    v_and_b32 v{F+2*q+1}, s26, v{b+q}")
        if k == 1:
            A(f"    s_cmp_lt_u32 s{cur}, {2*MB2}")
        A("    s_waitcnt vmcnt(8)")
        if k == 1:
            A("    s_cbranch_scc1 " + ("L_skip" if defer else "L_flag"))
            if not defer:
                A("L_back:")
        load(k, 0, 35)
        if k == 1 and defer:
            A("L_skip:")
        if stamps:
            A("    s_memrealtime s[52:53]")
        for j in range(4):
            A(f"    v_dot2c_f32_bf16 v{6+(j&1)}, s25, v{b+4+j}")
        u = []
        for q in range(4, 8):
            u += [f"    v_lshlrev_b32 v{F+2*q}, 16, v{b+q}", f"    v_and_b32 v{F+2*q+1}, s26, v{b+q}"]
        for _ in range(3): A(u.pop(0))
        A("    v_add_f32 v6, v6, v7")
        fill = [[u.pop(0), u.pop(0)], [u.pop(0), u.pop(0)], [u.pop(0), "    s_nop 0"], ["    s_nop 1"], ["    s_nop 1"], ["    s_nop 1"]]
        for ctl, fl in zip(RED, fill):
            for q in fl: A(q)
            dpp(6, ctl)
        A("    s_nop 0")
        A("    v_readlane_b32 s42, v6, 63")
        A("    s_nop 1")
        A("    v_cvt_pk_bf16_f32 v6, 0, s42")
        for q in range(8):
            f = F + 2 * q
            A(f"    v_pk_fma_f32 v[{f}:{f+1}], v[6:7], v[4:5], v[{f}:{f+1}] op_sel_hi:[0,0,1]   ; x - mean")
        for q in range(8):
            f = F + 2 * q
            a = 8 + 2 * (q & 1)
            if q < 2:
                A(f"    v_pk_mul_f32 v[{a}:{a+1}], v[{f}:{f+1}], v[{f}:{f+1}]")
            else:
                A(f"    v_pk_fma_f32 v[{a}:{a+1}], v[{f}:{f+1}], v[{f}:{f+1}], v[{a}:{a+1}]")
        A("    v_pk_add_f32 v[8:9], v[8:9], v[10:11]")
        A("    v_add_f32 v8, v8, v9")
        fill = [["    s_nop 1"], ["    s_nop 1"], ["    s_nop 1"], ["    s_waitcnt lgkmcnt(0)", "    s_lshl_b32 s40, s40, s24"],
                ["    s_lshl_b32 s41, s41, s24", "    s_and_b32 s40, s40, s26"], ["    s_and_b32 s41, s41, s26", "    v_mov_b32 v13, s41"]]
        for ctl, fl in zip(RED, fill):
            for q in fl: A(q)
            dpp(8, ctl)
        A("    s_nop 0")
        A("    v_readlane_b32 s42, v8, 63")
        A("    s_nop 1")
        A("    v_cvt_pk_bf16_f32 v8, 0, s42")
        A("    v_fma_f32 v8, v8, -v4, v5              ; var + 1e-5")
        A("    v_cvt_pk_bf16_f32 v8, 0, v8")
        A("    v_sqrt_f32 v8, v8")
        A("    s_nop 0")
        A("    v_cvt_pk_bf16_f32 v8, 0, v8")
        A("    v_rcp_f32 v8, v8")
        if k == 1 and defer:
            A(f"    s_cmp_lt_u32 s{cur}, {2*MB2}")
        else:
            A("    s_nop 0")
        A("    v_mul_f32 v12, s40, v8                 ; g / std")
        if k == 1 and defer:
            A("    s_cbranch_scc1 L_flag")
            A("L_back:")
        for h in range(2):
            for j in range(4):
                f = F + 2 * (4 * h + j)
                A(f"    v_pk_fma_f32 v[{f}:{f+1}], v[{f}:{f+1}], v[12:13], v[12:13] op_sel:[0,0,1] op_sel_hi:[1,0,1]")
            for j in range(4):
                q = 4 * h + j
                A(f"    v_cvt_pk_bf16_f32 v{Y+q}, v{F+2*q}, v{F+2*q+1}")
            A(f"    buffer_store_dwordx4 v[{Y+4*h}:{Y+4*h+3}], v2, s[28:31], s{cur} offen" + (f" offset:{h*1024}" if h else "") + st)
        if stamps:
            A(f"    s_lshr_b32 s56, s{cur}, 21")
            A("    s_waitcnt lgkmcnt(0)")
            A("    s_mov_b32 m0, s56")
            A("    v_writelane_b32 v64, s52, m0")
        if k == 0:
            if not noflag:
                A("    s_load_dword s22, s[10:11], 0x0        ; the answer (used after the first row only)")
            A(f"    s_cmp_ge_u32 s{cur}, {15*MB2}")
            A("    s_cbranch_scc1 L_end")
        A(f"    s_mov_b32 s{cur}, s35")

    def flagcode():
        A("L_flag:")
        if noflag:
            A(f"    s_mov_b32 s22, {8|max(fixk,0)}")
        else:
            A("    s_waitcnt lgkmcnt(0)")
            A("    s_cmp_eq_u32 s22, 0")
            A("    s_cbranch_scc1 L_slow")
        A("L_got:")
        A("    s_add_u32 s22, s22, s2")
        A("    s_and_b32 s35, s33, 0x1f1800")
        A("    s_and_b32 s23, s22, 4")
        A("    s_lshl_b32 s23, s23, 11")
        A("    s_or_b32 s35, s35, s23                 ; half = m >> 2")
        A("    s_and_b32 s22, s22, 3")
        A("    s_lshl_b32 s22, s22, 14")
        A("    s_or_b32 s35, s35, s22                 ; pair = m & 3")
        A(f"    s_or_b32 s35, s35, {4*MB2}             ; row 4")
        if defer:
            load(1, 0, 35)
        A("    s_branch L_back")
        if not noflag:
            A("L_slow:")
            A(f"    s_cmp_ge_u32 s27, {nl}")
            A("    s_cbranch_scc1 L_poll0")
            A("    s_atomic_cmpswap s[38:39], s[10:11], 0x0   ; a leader offers its best guess; the first offer stands")
            A("L_poll0:")
            A(f"    s_movk_i32 s23, {wtmo}")
            A("L_poll:")
            A("    global_load_dword v1, v3, s[10:11] sc1")
            A("    s_waitcnt vmcnt(0)")
            A("    v_readfirstlane_b32 s22, v1")
            A("    s_cmp_lg_u32 s22, 0")
            A("    s_cbranch_scc1 L_got")
            A("    s_sub_u32 s23, s23, 1")
            A("    s_cmp_lg_u32 s23, 0")
            A("    s_cbranch_scc1 L_poll")
            A("    s_mov_b32 s22, 8")
            A("    s_atomic_cmpswap s[22:23], s[10:11], 0x0 glc")
            A("    s_waitcnt lgkmcnt(0)")
            A("    s_max_u32 s22, s22, 8")
            A("    s_branch L_got")

    if fpos:
        A("    s_branch L_loop")
        flagcode()
    A("L_loop:")
    body(0); body(1); body(2)
    A("    s_branch L_loop")
    A("L_end:")
    if stamps:
        A("    s_waitcnt vmcnt(0)")
        A("    s_memrealtime s[56:57]")
        A("    s_waitcnt lgkmcnt(0)")
        A("L_hold:\n    s_sleep 4\n    s_memrealtime s[58:59]\n    s_waitcnt lgkmcnt(0)\n    s_sub_u32 s58, s58, s50\n    s_cmp_lt_u32 s58, 1200\n    s_cbranch_scc1 L_hold")
        A("    v_readlane_b32 s60, v64, 0")
        A("    v_mov_b32 v4, s50\n    v_mov_b32 v6, s52\n    v_mov_b32 v7, s56\n    v_mov_b32 v5, s60")
        A("    s_lshl_b32 s48, s48, 4")
        A("    v_lshrrev_b32 v2, 2, v2")
        A("    s_mov_b64 exec, 1")
        A("    buffer_store_dwordx4 v[4:7], v3, s[44:47], s48 offen")
        A("    s_lshl_b32 s48, s48, 2")
        A("    s_add_u32 s48, s48, 0x100000")
        A("    s_mov_b64 exec, 0xffff")
        A("    buffer_store_dword v64, v2, s[44:47], s48 offen")
    A("L_done:")
    A("    s_endpgm")
    if not fpos:
        flagcode()
    nv = X + 24 + (1 if stamps else 0)
    A('.section .rodata,"a"')
    A(".p2align 6")
    A(f".amdhsa_kernel {NAME}")
    A(f"  .amdhsa_next_free_vgpr {nv}")
    A(f"  .amdhsa_next_free_sgpr {64 if stamps else 48}")
    A(f"  .amdhsa_accum_offset {(nv+3)//4*4}")
    A("  .amdhsa_group_segment_fixed_size 0")
    A("  .amdhsa_kernarg_size 48")
    A("  .amdhsa_user_sgpr_count 2")
    A("  .amdhsa_user_sgpr_kernarg_segment_ptr 1")
    A("  .amdhsa_system_sgpr_workgroup_id_x 1")
    A("  .amdhsa_float_denorm_mode_32 3")
    A(".end_amdhsa_kernel")
    return "\n".join(L) + "\n"


def parse(sp):
    kw = {}
    for kv in sp.split(","):
        if not kv: continue
        k, v = kv.split("=")
        kw[k] = ((" " + v.replace("+", " ")) if v else "") if k in ("ld", "st") else int(v, 0)
    return kw


if __name__ == "__main__":
    import os, json, subprocess
    outdir = sys.argv[1]
    os.makedirs(outdir, exist_ok=True)
    names = []
    for sp in sys.argv[2:]:
        fn = "g8_" + sp.replace("=", "").replace(",", "_").replace("+", "") + ".s"
        open(f"{outdir}/{fn}", "w").write(gen(**parse(sp)))
        names.append(fn)
    r = subprocess.run(["python", "build.py"] + names, cwd=outdir, capture_output=True, text=True)
    if r.returncode or r.stderr:
        print(r.stdout, r.stderr)
        if r.returncode: sys.exit(1)
    open(f"{outdir}/list.txt", "a").write(r.stdout)
    rel = os.path.relpath(os.path.abspath(outdir), "code")
    print(json.dumps(["gen/bench2", f"{rel}/list.txt"] + [f"{rel}/" + x.split(":")[0] for x in open(f"{outdir}/list.txt").read().split()]))
    print(json.dumps([f"{rel}/" + n for n in names]))
```

```python
import sys

HEADER = """; Kernarg layout for this problem (48 bytes, ptrs only, base s[0:1]):
;   offset   0: d_in[0] x  shape=(32, 512, 32, 32) dtype=bfloat16 strides=(1048576, 2048, 64, 2) contiguous=True
;   offset   8: d_in[1] g  shape=(512,) dtype=bfloat16 strides=(2,) contiguous=True
;   offset  16: d_in[2] b  shape=(512,) dtype=bfloat16 strides=(2,) contiguous=True
"""
NAME = "standalone__instancenorm__sampling_kernel"
MB4 = 4 << 20


def gen(ld=" nt", st=" sc1", D=3, D0=2, Dend=2, efrom=5, endlate=0, tp=2, prio=1, iw=0, pb=1, alt=0,
        fixk=-1, win=16, wtmo=256, noflag=0, nl=8, align=12, fpos=0, dum=0, pg4=0, neu=0, dw=4, math=2, gpos=2, sq=0):
    L = []
    A = L.append
    nwg, I, R0 = 256, 8, 2
    F, DATA = 16, 32
    nbuf = (max(D, D0, Dend) + 1) // 2 + 1
    A(HEADER + f"; @launch grid=({nwg},1,1) block=(512,1,1) lds=0")
    A('.amdgcn_target "amdgcn-amd-amdhsa--gfx950"')
    A(".text")
    A(f".globl {NAME}")
    if align > 8:
        A(f".p2align {align}")
    A(".p2align 8")
    A(f".type {NAME},@function")
    A(f"{NAME}:")
    A("    s_load_dwordx2 s[12:13], s[0:1], 0     ; x")
    A("    s_load_dwordx4 s[4:7], s[0:1], 8       ; g, b")
    A("    s_load_dwordx4 s[8:11], s[0:1], 24")
    A("    v_readfirstlane_b32 s20, v0")
    A("    v_and_b32 v2, 63, v0")
    A(f"    s_cmp_ge_u32 s2, {nwg}")
    A("    s_cbranch_scc1 L_done")
    A("    v_lshlrev_b32 v2, 4, v2")
    if sq:
        A("    s_lshl_b32 s21, s20, 8")
        A("    s_or_b32 s21, s21, s20")
        if sq == 2:
            A("    s_xor_b32 s21, s21, 0x10000")
        A("    s_and_b32 s21, s21, 0x100c0")
        A("    s_lshl_b32 s32, s2, 8")
        A("    s_or_b32 s32, s32, s21")
        A("    s_lshl_b32 s32, s32, 5")
    else:
        A("    s_lshl_b32 s32, s2, 9")
        A("    s_add_u32 s32, s32, s20")
        A("    s_lshl_b32 s32, s32, 5")
    if neu:
        A("    s_lshr_b32 s21, s32, 1")
        A("    s_xor_b32 s21, s21, s32")
        A("    s_and_b32 s21, s21, 8192")
        A("    s_mul_i32 s21, s21, 3")
        A("    s_xor_b32 s32, s32, s21")
        if neu == 2:
            A("    s_lshl_b32 s21, s2, 10")
            A("    s_and_b32 s21, s21, 8192")
            A("    s_xor_b32 s32, s32, s21")
    if alt:
        A("    s_xor_b32 s33, s32, 8192")
        A(f"    s_add_u32 s33, s33, {MB4}")
    else:
        A(f"    s_add_u32 s33, s32, {MB4}")
    A("    s_mov_b32 s14, 0x2000000")
    A("    s_mov_b32 s15, 0x20000")
    if not noflag:
        A("    s_getreg_b32 s23, hwreg(HW_REG_HW_ID, 0, 16)")
        A("    s_lshr_b32 s22, s0, 3")
        A("    s_add_u32 s22, s22, s2")
        A("    s_lshl_b32 s23, s23, 16")
        A("    s_xor_b32 s22, s22, s23")
        A("    s_mul_i32 s22, s22, 0x9e3779b1")
        A("    s_lshr_b32 s22, s22, 7")
        A("    s_and_b32 s22, s22, 0xdfdfc0")
        A("    s_lshl_b32 s23, s2, 13")
        A("    s_and_b32 s23, s23, 8192")
        A("    s_or_b32 s22, s22, s23                 ; odd leaders try the upper half first")
        A("    s_bitset1_b32 s22, 24")
        A("    s_xor_b32 s23, s22, 8192")
        A("    s_mov_b32 s19, -1")
        A("    s_lshl_b32 s27, s20, 2")
        A(f"    s_or_b32 s27, s27, s2                  ; < {nl}: wave 0 of the first workgroups")
        A(f"    s_cmp_ge_u32 s27, {nl}")
    A("    s_waitcnt lgkmcnt(0)")
    if not noflag:
        A("    s_cbranch_scc1 L_np")
        A("    s_load_dword s18, s[12:13], s22 glc")
        A("    s_load_dword s19, s[12:13], s23 glc")
        A("L_np:")
    ops = []
    nxt = [0]
    known = [2 * R0 - 1]

    def buf(h):
        return DATA + ((h // 2) % nbuf) * 8 + (h & 1) * 4

    def load(h):
        b = buf(h)
        A(f"    buffer_load_dwordx4 v[{b}:{b+3}], v2, s[12:15], s{32 + h//2} offen" + (" offset:1024" if h & 1 else "") + ld)
        ops.append(("l", h))

    def wait(tag):
        A(f"    s_waitcnt vmcnt({len(ops) - 1 - ops.index(tag)})")

    def upto(h):
        while nxt[0] <= min(h, 2 * I - 1, known[0]):
            load(nxt[0]); nxt[0] += 1

    upto(1)
    A("    s_mov_b32 s28, s8")
    A("    s_mov_b32 s29, s9")
    A("    s_mov_b32 s30, 0x2000000")
    A("    s_mov_b32 s31, 0x20000")
    A("    s_mov_b32 s25, 0x3f803f80              ; bf16 (1.0, 1.0)")
    A("    s_mov_b32 s26, 0xffff0000")
    A("    v_mov_b32 v4, 0xba800000               ; -1/1024")
    A("    v_mov_b32 v5, 0x3727c5ac               ; 1e-5")
    A("    v_mov_b32 v3, 0")
    if math == 2:
        A("    v_mov_b32 v14, 0x3f80")
        A("    v_mov_b32 v15, 0x3f800000")
    if math:
        A("    s_mov_b32 s25, 0x44800000              ; 1024.0")
    A("    s_bitcmp0_b32 s20, 6")
    A("    s_cselect_b32 s24, 16, 0")
    if prio:
        A("    s_cmp_lt_u32 s20, 256")
        A(f"    s_cbranch_scc{1 if prio == 1 else 0} L_pd")
        A("    s_setprio 1")
        A("L_pd:")
    if pb and D0 > 2:
        A("    s_barrier                              ; rows return in issue order: every wave's first row goes first")
    upto(D0 - 1)
    if iw:
        A("    s_mov_b64 vcc, -1")
        for w in range(1, 8):
            if (iw >> w) & 1 or iw == 1:
                A(f"    s_cmp_eq_u32 s20, {64*w}")
                A(f"    s_cbranch_scc1 L_r{w}")
        A("L_ret:")
        A("    s_mov_b64 vcc, 0")
    if not noflag:
        A(f"    s_cmp_ge_u32 s27, {nl}")
        A("    s_cbranch_scc1 L_r0")
        A("    s_getreg_b32 s21, hwreg(HW_REG_XCC_ID, 0, 2)")
        A("    s_lshr_b32 s44, s22, 11")
        A("    s_and_b32 s44, s44, 4")
        A("    s_or_b32 s44, s44, s21                 ; this workgroup's slot if the first line is the close one")
        A("    s_sub_u32 s44, s44, s2")
        A("    s_and_b32 s44, s44, 7")
        A("    s_or_b32 s44, s44, 8")
        if fixk >= 0:
            A(f"    s_mov_b32 s44, {8|fixk}")
        A("    s_mov_b32 s45, 0")
        A("    s_xor_b32 s46, s44, 4")
        A("    s_mov_b32 s47, 0")
        A("    s_waitcnt lgkmcnt(1)                   ; first line is here: does the second stay away for a while?")
        for _ in range(win // 16): A("    s_nop 15")
        if win % 16: A(f"    s_nop {win % 16 - 1}")
        A("    s_cmp_eq_u32 s19, -1")
        A("    s_cbranch_scc0 L_r0")
        A("    s_atomic_cmpswap s[44:45], s[10:11], 0x0")
        A("    s_mov_b32 s46, s44")

    def dpp(reg, ctl):
        A(f"    v_add_f32_dpp v{reg}, v{reg}, v{reg} {ctl}")

    RED = ["row_ror:8 row_mask:0xf bank_mask:0xf", "row_ror:4 row_mask:0xf bank_mask:0xf",
           "row_ror:2 row_mask:0xf bank_mask:0xf", "row_ror:1 row_mask:0xf bank_mask:0xf",
           "row_bcast:15 row_mask:0xa bank_mask:0xf", "row_bcast:31 row_mask:0xc bank_mask:0xf"]

    def flag_issue():
        if noflag:
            A(f"    s_mov_b32 s22, {8|max(fixk,0)}")
        elif not gpos:
            A("    s_load_dword s22, s[10:11], 0x0")
        if sq:
            A("    s_and_b32 s34, s32, 0x3f1800")
            return
        A("    s_lshr_b32 s21, s20, 6                 ; w")
        A("    s_and_b32 s23, s21, 4")
        A("    s_add_u32 s23, s23, s21")
        A("    s_and_b32 s21, s23, 11                 ; (w>>2)*8 + (w&3)")
        A("    s_lshr_b32 s23, s2, 3")
        A("    s_lshl_b32 s34, s23, 6")
        A("    s_or_b32 s34, s34, s21")

    def flag_use():
        if not noflag:
            A("    s_waitcnt lgkmcnt(0)")
            A("    s_cmp_eq_u32 s22, 0")
            A("    s_cbranch_scc1 L_slow")
        A("L_got:")
        A("    s_add_u32 s22, s22, s2")
        if sq:
            A("    s_lshr_b32 s23, s34, 19")
            A("    s_xor_b32 s23, s23, s22")
            A("    s_and_b32 s23, s23, 4")
            A("    s_lshl_b32 s23, s23, 11")
            A("    s_or_b32 s34, s34, s23")
            A("    s_and_b32 s22, s22, 3")
            A("    s_lshl_b32 s22, s22, 14")
            A("    s_or_b32 s34, s34, s22")
        else:
            A("    s_lshr_b32 s23, s2, 5")
            A("    s_xor_b32 s23, s23, s22")
            A("    s_and_b32 s23, s23, 4")
            A("    s_or_b32 s34, s34, s23")
            A("    s_and_b32 s22, s22, 3")
            A("    s_lshl_b32 s22, s22, 4")
            A("    s_or_b32 s34, s34, s22")
            A("    s_lshl_b32 s34, s34, 11")
        A(f"    s_add_u32 s34, s34, {2*MB4}")
        A(f"    s_add_u32 s35, s34, {MB4}")
        known[0] = 99

    nst = 0
    lim = 2 * I - 1 - endlate
    for it in range(I):
        b = buf(2 * it)
        if it == 4 and pg4:
            A("    s_branch L_r4")
            A(".p2align 12                                ; instruction prefetch stops at 4 KiB: start a round there")
        A(f"L_r{it}:                                       ; ---- round {it}")
        if iw and it and ((iw >> it) & 1 or iw == 1):
            A("    s_cbranch_vccnz L_ret")
        newp = it == 0 or (it == 1 and alt) or it == 2
        if newp:
            A(f"    s_lshr_b32 s21, s{32+it}, 10")
            A("    s_and_b32 s21, s21, 0x3fc")
            A("    s_load_dword s40, s[4:5], s21")
            A("    s_load_dword s41, s[6:7], s21          ; b")
        if it >= 2:
            for r in (it + 2, it + 3) if it == 2 else (it + 3,):
                if r < I:
                    A(f"    s_add_u32 s{32+r}, s34, {(r-2)*MB4}")
        d = Dend if it >= efrom else D
        if math == 0:
            A("    v_mov_b32 v6, 0")
            A("    v_mov_b32 v7, 0")
            for u in range(2):
                wait(("l", 2 * it + u))
                if it == 1 and u == fpos - 1:
                    flag_use()
                upto(min(2 * it + u + d, lim))
                for j in range(4):
                    A(f"    v_dot2c_f32_bf16 v{6+(j&1)}, s25, v{b+4*u+j}")
            u_ = []
            for k in range(8):
                u_ += [f"    v_lshlrev_b32 v{F+2*k}, 16, v{b+k}", f"    v_and_b32 v{F+2*k+1}, s26, v{b+k}"]
            for _ in range(3): A(u_.pop(0))
            A("    v_add_f32 v6, v6, v7")
            for ctl in RED:
                A(u_.pop(0)); A(u_.pop(0)); dpp(6, ctl)
            A(u_.pop(0))
            A("    v_readlane_b32 s42, v6, 63")
            A("    s_nop 1")
            A("    v_cvt_pk_bf16_f32 v6, 0, s42")
            for k in range(8):
                f = F + 2 * k
                A(f"    v_pk_fma_f32 v[{f}:{f+1}], v[6:7], v[4:5], v[{f}:{f+1}] op_sel_hi:[0,0,1]   ; x - mean")
            for k in range(8):
                f = F + 2 * k
                a = 8 + 2 * (k & 1)
                if k < 2:
                    A(f"    v_pk_mul_f32 v[{a}:{a+1}], v[{f}:{f+1}], v[{f}:{f+1}]")
                else:
                    A(f"    v_pk_fma_f32 v[{a}:{a+1}], v[{f}:{f+1}], v[{f}:{f+1}], v[{a}:{a+1}]")
            A("    v_pk_add_f32 v[8:9], v[8:9], v[10:11]")
            A("    v_add_f32 v8, v8, v9")
            if newp:
                fill = [["    s_nop 1"], ["    s_nop 1"], ["    s_nop 1"], ["    s_waitcnt lgkmcnt(0)", "    s_lshl_b32 s40, s40, s24"],
                        ["    s_lshl_b32 s41, s41, s24", "    s_and_b32 s40, s40, s26"], ["    s_and_b32 s41, s41, s26", "    v_mov_b32 v13, s41"]]
            else:
                fill = [["    s_nop 1"]] * 6
            for ctl, fl in zip(RED, fill):
                for q in fl: A(q)
                dpp(8, ctl)
            A("    s_nop 0")
            A("    v_readlane_b32 s42, v8, 63")
            A("    s_nop 1")
            A("    v_cvt_pk_bf16_f32 v8, 0, s42")
            A("    v_fma_f32 v8, v8, -v4, v5              ; var + 1e-5")
            A("    v_cvt_pk_bf16_f32 v8, 0, v8")
            A("    v_sqrt_f32 v8, v8")
            A("    s_nop 0")
            A("    v_cvt_pk_bf16_f32 v8, 0, v8")
            A("    v_rcp_f32 v8, v8")
            A("    s_nop 0")
            A("    v_mul_f32 v12, s40, v8                 ; g / std")
        else:
            for u in range(2):
                wait(("l", 2 * it + u))
                if u == 0:
                    A(f"    v_readfirstlane_b32 s16, v{b}")
                if it == 1 and u == fpos - 1:
                    flag_use()
                upto(min(2 * it + u + d, lim))
                if u == 0:
                    A("    s_lshl_b32 s16, s16, 16                ; c = first element of the row")
                ks = range(4 * u, 4 * u + 4)
                if math == 2:
                    for k in ks:
                        A(f"    v_dot2_f32_bf16 v{F+2*k}, v{b+k}, v14, s16 neg_lo:[0,0,1]")
                        A(f"    v_dot2_f32_bf16 v{F+2*k+1}, v{b+k}, v15, s16 neg_lo:[0,0,1]")
                else:
                    for k in ks:
                        A(f"    v_lshlrev_b32 v{F+2*k}, 16, v{b+k}")
                        A(f"    v_and_b32 v{F+2*k+1}, s26, v{b+k}")
                    for k in ks:
                        f = F + 2 * k
                        A(f"    v_pk_add_f32 v[{f}:{f+1}], v[{f}:{f+1}], s[16:17] op_sel_hi:[1,0] neg_lo:[0,1] neg_hi:[0,1]   ; x - c")
                for k in ks:
                    f = F + 2 * k
                    if k == 0:
                        A(f"    v_pk_mul_f32 v[8:9], v[{f}:{f+1}], v[{f}:{f+1}]")
                    elif k == 1:
                        A(f"    v_pk_add_f32 v[6:7], v[{F}:{F+1}], v[{f}:{f+1}]")
                        A(f"    v_pk_fma_f32 v[8:9], v[{f}:{f+1}], v[{f}:{f+1}], v[8:9]")
                    else:
                        A(f"    v_pk_add_f32 v[6:7], v[6:7], v[{f}:{f+1}]")
                        A(f"    v_pk_fma_f32 v[8:9], v[{f}:{f+1}], v[{f}:{f+1}], v[8:9]")
            A("    v_add_f32 v6, v6, v7")
            A("    v_add_f32 v8, v8, v9")
            if newp:
                fill = ["    v_mov_b32 v10, s16", "    s_waitcnt lgkmcnt(" + ("1" if False else "0") + ")", "    s_lshl_b32 s40, s40, s24", "    s_lshl_b32 s41, s41, s24",
                        "    s_and_b32 s40, s40, s26", "    s_and_b32 s41, s41, s26"]
            else:
                fill = ["    v_mov_b32 v10, s16"] + ["    s_nop 0"] * 5
            for n_, (ctl, fl) in enumerate(zip(RED, fill)):
                A(fl)
                if it == 0 and gpos == 1 and n_ == 1 and not noflag:
                    A("    s_load_dword s22, s[10:11], 0x0")
                dpp(6, ctl); dpp(8, ctl)
            A("    v_readlane_b32 s42, v6, 63             ; S1 = sum(x - c)")
            A("    v_readlane_b32 s43, v8, 63             ; S2 = sum((x - c)^2)")
            A("    s_nop 0")
            A("    v_fma_f32 v6, s42, -v4, v10            ; mean")
            A("    v_add_f32 v7, s42, s42")
            A("    v_cvt_pk_bf16_f32 v6, 0, v6")
            A("    v_sub_f32 v6, v6, v10                  ; e = mean - c")
            A("    v_fma_f32 v7, v6, s25, -v7")
            A("    v_fma_f32 v8, v6, v7, s43")
            A("    v_cvt_pk_bf16_f32 v8, 0, v8")
            A("    v_fma_f32 v8, v8, -v4, v5              ; var + 1e-5")
            A("    v_cvt_pk_bf16_f32 v8, 0, v8")
            A("    v_sqrt_f32 v8, v8")
            A("    s_nop 0")
            A("    v_cvt_pk_bf16_f32 v8, 0, v8")
            A("    v_rcp_f32 v8, v8")
            A("    s_nop 0")
            A("    v_mul_f32 v12, s40, v8                 ; g / std")
            A("    v_fma_f32 v13, -v6, v12, s41           ; b - e * g / std")
            if it == 0 and gpos == 2 and not noflag:
                A("    s_load_dword s22, s[10:11], 0x0")
        if it == 1 and fpos == 3:
            flag_use(); upto(min(2 * it + 1 + d, lim))
        for h in range(2):
            for j in range(4):
                f = F + 2 * (4 * h + j)
                A(f"    v_pk_fma_f32 v[{f}:{f+1}], v[{f}:{f+1}], v[12:13], v[12:13] op_sel:[0,0,1] op_sel_hi:[1,0,1]")
            for j in range(4):
                k = 4 * h + j
                A(f"    v_cvt_pk_bf16_f32 v{b+k}, v{F+2*k}, v{F+2*k+1}")
            stf = "" if nst >= 2 * I - tp else st
            A(f"    buffer_store_dwordx4 v[{b+4*h}:{b+4*h+3}], v2, s[28:31], s{32+it} offen" + (" offset:1024" if h else "") + stf)
            ops.append(("s", it, h)); nst += 1
        if it == 0:
            flag_issue()
            if fpos == 0:
                flag_use(); upto(2 * it + 1 + d)
        upto(2 * it + 3)
    if dum:
        A(f"    s_cmp_ge_u32 s20, {64*dw}")
        A("    s_cbranch_scc1 L_done")
        A("    s_xor_b32 s23, s34, 32768")
        for q in range(dum):
            A(f"    buffer_load_dwordx4 v[16:19], v2, s[12:15], s23 offen offset:{q*1024}{ld}")
    A("L_done:")
    A("    s_endpgm")
    if not noflag:
        A("L_slow:")
        A(f"    s_cmp_ge_u32 s27, {nl}")
        A("    s_cbranch_scc1 L_poll0")
        A("    s_atomic_cmpswap s[46:47], s[10:11], 0x0   ; a leader offers its best guess; the first offer stands")
        A("L_poll0:")
        A(f"    s_movk_i32 s23, {wtmo}")
        A("L_poll:")
        A("    global_load_dword v1, v3, s[10:11] sc1")
        A("    s_waitcnt vmcnt(0)")
        A("    v_readfirstlane_b32 s22, v1")
        A("    s_cmp_lg_u32 s22, 0")
        A("    s_cbranch_scc1 L_got")
        A("    s_sub_u32 s23, s23, 1")
        A("    s_cmp_lg_u32 s23, 0")
        A("    s_cbranch_scc1 L_poll")
        A("    s_mov_b32 s22, 8")
        A("    s_atomic_cmpswap s[22:23], s[10:11], 0x0 glc")
        A("    s_waitcnt lgkmcnt(0)")
        A("    s_max_u32 s22, s22, 8")
        A("    s_branch L_got")
    nv = DATA + nbuf * 8
    A('.section .rodata,"a"')
    A(".p2align 6")
    A(f".amdhsa_kernel {NAME}")
    A(f"  .amdhsa_next_free_vgpr {nv}")
    A("  .amdhsa_next_free_sgpr 48")
    A(f"  .amdhsa_accum_offset {(nv+3)//4*4}")
    A("  .amdhsa_group_segment_fixed_size 0")
    A("  .amdhsa_kernarg_size 48")
    A("  .amdhsa_user_sgpr_count 2")
    A("  .amdhsa_user_sgpr_kernarg_segment_ptr 1")
    A("  .amdhsa_system_sgpr_workgroup_id_x 1")
    A("  .amdhsa_float_denorm_mode_32 3")
    A(".end_amdhsa_kernel")
    return "\n".join(L) + "\n"


def parse(sp):
    kw = {}
    for kv in sp.split(","):
        if not kv: continue
        k, v = kv.split("=")
        kw[k] = ((" " + v.replace("+", " ")) if v else "") if k in ("ld", "st") else int(v, 0)
    return kw


if __name__ == "__main__":
    import os, json, subprocess
    outdir = sys.argv[1]
    os.makedirs(outdir, exist_ok=True)
    names = []
    for sp in sys.argv[2:]:
        fn = "g9_" + sp.replace("=", "").replace(",", "_").replace("+", "") + ".s"
        open(f"{outdir}/{fn}", "w").write(gen(**parse(sp)))
        names.append(fn)
    r = subprocess.run(["python", "build.py"] + names, cwd=outdir, capture_output=True, text=True)
    if r.returncode or r.stderr:
        print(r.stdout, r.stderr)
        if r.returncode: sys.exit(1)
    open(f"{outdir}/list.txt", "a").write(r.stdout)
    rel = os.path.relpath(os.path.abspath(outdir), "code")
    print(json.dumps(["gen/bench2", f"{rel}/list.txt"] + [f"{rel}/" + x.split(":")[0] for x in open(f"{outdir}/list.txt").read().split()]))
    print(json.dumps([f"{rel}/" + n for n in names]))
```

```python
import sys

NAME = "standalone__instancenorm__sampling_kernel"
MB4 = 4 << 20

HEADER = """; Kernarg layout for this problem (48 bytes, ptrs only, base s[0:1]):
; @launch grid=(256,1,1) block=(512,1,1) lds=0
;
;
;
"""


def gen(pre=6, D=3, Dend=2, efrom=5, tp=2, wtmo=256, nl=8, extra=0, ool=0, perm=1234567):
    L = []
    A = L.append
    I, F, DATA, nbuf = 8, 16, 32, 3
    ld, st = " nt", " sc1"
    P = [int(c) for c in str(perm).zfill(8)]
    A(HEADER + '.amdgcn_target "amdgcn-amd-amdhsa--gfx950"')
    A(".text")
    A(f".globl {NAME}")
    A(".p2align 12                                ; keeps the start-up code inside one 4 KiB fetch page")
    A(".p2align 8")
    A(f".type {NAME},@function")
    A(f"{NAME}:")
    A("    s_load_dwordx2 s[12:13], s[0:1], 0     ; x")
    A("    s_load_dwordx4 s[4:7], s[0:1], 8       ; g, b")
    A("    s_load_dwordx4 s[8:11], s[0:1], 24")
    A("    v_readfirstlane_b32 s20, v0            ; 64 * wave")
    A("    v_and_b32 v2, 63, v0")
    A("    s_cmp_ge_u32 s2, 256")
    A("    s_cbranch_scc1 L_done")
    A("    v_lshlrev_b32 v2, 4, v2")
    A("    s_lshl_b32 s32, s2, 9")
    A("    s_add_u32 s32, s32, s20")
    A("    s_lshl_b32 s32, s32, 5")
    A(f"    s_add_u32 s33, s32, {P[1]*MB4}")
    if P[0]:
        A(f"    s_add_u32 s32, s32, {P[0]*MB4}")
    A("    s_mov_b32 s14, 0x2000000               ; x descriptor s[12:15]")
    A("    s_mov_b32 s15, 0x20000")
    hashc = [
        "    ; lines to race: picked differently in every launch so that they are not special in any cache",
        "    s_getreg_b32 s23, hwreg(HW_REG_HW_ID, 0, 16)",
        "    s_lshr_b32 s22, s0, 3",
        "    s_add_u32 s22, s22, s2",
        "    s_lshl_b32 s23, s23, 16",
        "    s_xor_b32 s22, s22, s23",
        "    s_mul_i32 s22, s22, 0x9e3779b1",
        "    s_lshr_b32 s22, s22, 7",
        "    s_and_b32 s22, s22, 0xdfdfc0",
        "    s_lshl_b32 s23, s2, 13",
        "    s_and_b32 s23, s23, 8192",
        "    s_or_b32 s22, s22, s23",
        "    s_bitset1_b32 s22, 24",
        "    s_xor_b32 s23, s22, 8192",
        "    s_mov_b32 s19, -1",
    ]
    if not ool:
        for q in hashc: A(q)
    A("    s_lshl_b32 s27, s20, 2")
    A(f"    s_or_b32 s27, s27, s2")
    A(f"    s_cmp_ge_u32 s27, {nl}")
    if ool:
        A("    s_cbranch_scc0 L_race")
        A("    s_waitcnt lgkmcnt(0)")
        A("L_np:")
    else:
        A("    s_waitcnt lgkmcnt(0)")
        A("    s_cbranch_scc1 L_np")
        A("    s_load_dword s18, s[12:13], s22 glc")
        A("    s_load_dword s19, s[12:13], s23 glc")
        A("L_np:")
    ops = []
    nxt = [0]
    known = [3]

    def buf(h):
        return DATA + ((h // 2) % nbuf) * 8 + (h & 1) * 4

    def load(h):
        b = buf(h)
        A(f"    buffer_load_dwordx4 v[{b}:{b+3}], v2, s[12:15], s{32 + h//2} offen" + (" offset:1024" if h & 1 else "") + ld)
        ops.append(("l", h))

    def wait(tag):
        A(f"    s_waitcnt vmcnt({len(ops) - 1 - ops.index(tag)})")

    def upto(h):
        while nxt[0] <= min(h, 2 * I - 1, known[0]):
            load(nxt[0]); nxt[0] += 1

    upto(1)
    A("    s_cmp_lt_u32 s20, 256")
    A("    s_cbranch_scc1 L_pd")
    A("    s_setprio 1")
    A("L_pd:")
    setup = [
        "    s_mov_b32 s28, s8",
        "    s_mov_b32 s29, s9",
        "    s_mov_b32 s30, 0x2000000",
        "    s_mov_b32 s31, 0x20000",
        "    s_mov_b32 s25, 0x44800000              ; 1024.0",
        "    s_mov_b32 s26, 0xffff0000",
        "    v_mov_b32 v4, 0xba800000               ; -1/1024",
        "    v_mov_b32 v5, 0x3727c5ac               ; 1e-5",
        "    v_mov_b32 v3, 0",
        "    v_mov_b32 v14, 0x3f80",
        "    v_mov_b32 v15, 0x3f800000",
        "    s_bitcmp0_b32 s20, 6",
        "    s_cselect_b32 s24, 16, 0",
        "    s_getreg_b32 s21, hwreg(HW_REG_XCC_ID, 0, 2)",
        "    s_lshr_b32 s44, s22, 11",
        "    s_and_b32 s44, s44, 4",
        "    s_or_b32 s44, s44, s21",
        "    s_sub_u32 s44, s44, s2",
        "    s_and_b32 s44, s44, 7",
        "    s_or_b32 s44, s44, 8",
        "    s_mov_b32 s45, 0",
        "    s_xor_b32 s46, s44, 4",
        "    s_mov_b32 s47, 0",
    ]
    for q in setup[:pre]: A(q)
    A("    s_waitcnt lgkmcnt(1)")
    for q in setup[pre:]: A(q)
    A(f"    s_cmp_ge_u32 s27, {nl}")
    A("    s_cbranch_scc1 L_r0")
    A("    s_cmp_eq_u32 s19, -1")
    A("    s_cbranch_scc0 L_r0")
    A("    s_atomic_cmpswap s[44:45], s[10:11], 0x0")
    A("    s_mov_b32 s46, s44")
    if ool:
        A("    s_branch L_r0")
        A("L_race:")
        for q in hashc: A(q)
        A("    s_waitcnt lgkmcnt(0)")
        A("    s_load_dword s18, s[12:13], s22 glc")
        A("    s_load_dword s19, s[12:13], s23 glc")
        A("    s_branch L_np")

    RED = ["row_ror:8 row_mask:0xf bank_mask:0xf", "row_ror:4 row_mask:0xf bank_mask:0xf",
           "row_ror:2 row_mask:0xf bank_mask:0xf", "row_ror:1 row_mask:0xf bank_mask:0xf",
           "row_bcast:15 row_mask:0xa bank_mask:0xf", "row_bcast:31 row_mask:0xc bank_mask:0xf"]

    nst = 0
    for it in range(I):
        b = buf(2 * it)
        A(f"L_r{it}:                                      ; ---------------- round {it}")
        newp = it in (0, 2)
        if newp:
            A(f"    s_lshr_b32 s21, s{32+it}, 10")
            A("    s_and_b32 s21, s21, 0x3fc")
            A("    s_load_dword s40, s[4:5], s21")
            A("    s_load_dword s41, s[6:7], s21          ; b")
        if it >= 2:
            for r in (it + 2, it + 3) if it == 2 else (it + 3,):
                if r < I:
                    A(f"    s_add_u32 s{32+r}, s34, {((P[r]-P[2])*MB4) & 0xffffffff}")
        d = Dend if it >= efrom else D
        for u in range(2):
            wait(("l", 2 * it + u))
            if u == 0:
                A(f"    v_readfirstlane_b32 s16, v{b}")
            upto(2 * it + u + d)
            if u == 0:
                A("    s_lshl_b32 s16, s16, 16                ; c")
            ks = range(4 * u, 4 * u + 4)
            for k in ks:
                A(f"    v_dot2_f32_bf16 v{F+2*k}, v{b+k}, v14, s16 neg_lo:[0,0,1]" + ("   ; d = x - c" if k == 0 else ""))
                A(f"    v_dot2_f32_bf16 v{F+2*k+1}, v{b+k}, v15, s16 neg_lo:[0,0,1]")
            for k in ks:
                f = F + 2 * k
                if k == 0:
                    A(f"    v_pk_mul_f32 v[8:9], v[{f}:{f+1}], v[{f}:{f+1}]")
                elif k == 1:
                    A(f"    v_pk_add_f32 v[6:7], v[{F}:{F+1}], v[{f}:{f+1}]")
                    A(f"    v_pk_fma_f32 v[8:9], v[{f}:{f+1}], v[{f}:{f+1}], v[8:9]")
                else:
                    A(f"    v_pk_add_f32 v[6:7], v[6:7], v[{f}:{f+1}]")
                    A(f"    v_pk_fma_f32 v[8:9], v[{f}:{f+1}], v[{f}:{f+1}], v[8:9]")
        A("    v_add_f32 v6, v6, v7")
        A("    v_add_f32 v8, v8, v9")
        if newp:
            fill = ["    v_mov_b32 v10, s16", "    s_waitcnt lgkmcnt(0)", "    s_lshl_b32 s40, s40, s24", "    s_lshl_b32 s41, s41, s24",
                    "    s_and_b32 s40, s40, s26", "    s_and_b32 s41, s41, s26"]
        else:
            fill = ["    v_mov_b32 v10, s16"] + ["    s_nop 0"] * 5
        for ctl, fl in zip(RED, fill):
            A(fl)
            A(f"    v_add_f32_dpp v6, v6, v6 {ctl}")
            A(f"    v_add_f32_dpp v8, v8, v8 {ctl}")
        A("    v_readlane_b32 s42, v6, 63             ; S1")
        A("    v_readlane_b32 s43, v8, 63             ; S2")
        A("    s_nop 0")
        A("    v_fma_f32 v6, s42, -v4, v10            ; mean")
        A("    v_add_f32 v7, s42, s42")
        A("    v_cvt_pk_bf16_f32 v6, 0, v6")
        A("    v_sub_f32 v6, v6, v10                  ; e")
        A("    v_fma_f32 v7, v6, s25, -v7")
        A("    v_fma_f32 v8, v6, v7, s43              ; 1024 var")
        A("    v_cvt_pk_bf16_f32 v8, 0, v8")
        A("    v_fma_f32 v8, v8, -v4, v5              ; var + 1e-5")
        A("    v_cvt_pk_bf16_f32 v8, 0, v8")
        A("    v_sqrt_f32 v8, v8")
        A("    s_nop 0")
        A("    v_cvt_pk_bf16_f32 v8, 0, v8            ; std")
        A("    v_rcp_f32 v8, v8")
        A("    s_nop 0")
        A("    v_mul_f32 v12, s40, v8                 ; g / std")
        A("    v_fma_f32 v13, -v6, v12, s41           ; b - e g / std")
        if it == 0:
            A("    s_load_dword s22, s[10:11], 0x0")
        for h in range(2):
            for j in range(4):
                f = F + 2 * (4 * h + j)
                A(f"    v_pk_fma_f32 v[{f}:{f+1}], v[{f}:{f+1}], v[12:13], v[12:13] op_sel:[0,0,1] op_sel_hi:[1,0,1]")
            for j in range(4):
                k = 4 * h + j
                A(f"    v_cvt_pk_bf16_f32 v{b+k}, v{F+2*k}, v{F+2*k+1}")
            stf = "" if nst >= 2 * I - tp else st
            A(f"    buffer_store_dwordx4 v[{b+4*h}:{b+4*h+3}], v2, s[28:31], s{32+it} offen" + (" offset:1024" if h else "") + stf)
            ops.append(("s", it, h)); nst += 1
        if it == 0:
            A("    s_lshr_b32 s21, s20, 6                 ; w")
            A("    s_and_b32 s23, s21, 4")
            A("    s_add_u32 s23, s23, s21")
            A("    s_and_b32 s21, s23, 11                 ; (w>>2)*8 + (w&3)")
            A("    s_lshr_b32 s23, s2, 3")
            A("    s_lshl_b32 s34, s23, 6")
            A("    s_or_b32 s34, s34, s21")
            A("    s_waitcnt lgkmcnt(0)")
            A("    s_cmp_eq_u32 s22, 0")
            A("    s_cbranch_scc1 L_slow")
            A("L_got:")
            A("    s_add_u32 s22, s22, s2")
            A("    s_lshr_b32 s23, s2, 5")
            A("    s_xor_b32 s23, s23, s22")
            A("    s_and_b32 s23, s23, 4")
            A("    s_or_b32 s34, s34, s23")
            A("    s_and_b32 s22, s22, 3")
            A("    s_lshl_b32 s22, s22, 4")
            A("    s_or_b32 s34, s34, s22")
            A("    s_lshl_b32 s34, s34, 11")
            A(f"    s_add_u32 s34, s34, {P[2]*MB4}")
            A(f"    s_add_u32 s35, s34, {((P[3]-P[2])*MB4) & 0xffffffff}")
            known[0] = 99
            upto(2 * it + 1 + d)
        upto(2 * it + 3)
    A("L_done:")
    A("    s_endpgm")
    A("L_slow:                                    ; k was not there yet")
    A(f"    s_cmp_ge_u32 s27, {nl}")
    A("    s_cbranch_scc1 L_poll0")
    A("    s_atomic_cmpswap s[46:47], s[10:11], 0x0")
    A("L_poll0:")
    A(f"    s_movk_i32 s23, {wtmo}")
    A("L_poll:")
    A("    global_load_dword v1, v3, s[10:11] sc1")
    A("    s_waitcnt vmcnt(0)")
    A("    v_readfirstlane_b32 s22, v1")
    A("    s_cmp_lg_u32 s22, 0")
    A("    s_cbranch_scc1 L_got")
    A("    s_sub_u32 s23, s23, 1")
    A("    s_cmp_lg_u32 s23, 0")
    A("    s_cbranch_scc1 L_poll")
    A("    s_mov_b32 s22, 8")
    A("    s_atomic_cmpswap s[22:23], s[10:11], 0x0 glc")
    A("    s_waitcnt lgkmcnt(0)")
    A("    s_max_u32 s22, s22, 8")
    A("    s_branch L_got")
    nv = DATA + nbuf * 8
    A('.section .rodata,"a"')
    A(".p2align 6")
    A(f".amdhsa_kernel {NAME}")
    A(f"  .amdhsa_next_free_vgpr {nv}")
    A("  .amdhsa_next_free_sgpr 48")
    A(f"  .amdhsa_accum_offset {(nv+3)//4*4}")
    A("  .amdhsa_group_segment_fixed_size 0")
    A("  .amdhsa_kernarg_size 48")
    A("  .amdhsa_user_sgpr_count 2")
    A("  .amdhsa_user_sgpr_kernarg_segment_ptr 1")
    A("  .amdhsa_system_sgpr_workgroup_id_x 1")
    A("  .amdhsa_float_denorm_mode_32 3")
    A(".end_amdhsa_kernel")
    return "\n".join(L) + "\n"


if __name__ == "__main__":
    import os, json, subprocess
    outdir = sys.argv[1]
    os.makedirs(outdir, exist_ok=True)
    names = []
    for sp in sys.argv[2:]:
        kw = {k: int(v, 0) for k, v in (kv.split("=") for kv in sp.split(",") if kv)}
        fn = "f_" + sp.replace("=", "").replace(",", "_") + ".s"
        open(f"{outdir}/{fn}", "w").write(gen(**kw))
        names.append(fn)
    r = subprocess.run(["python", "build.py"] + names, cwd=outdir, capture_output=True, text=True)
    if r.returncode or r.stderr:
        print(r.stdout, r.stderr)
        if r.returncode: sys.exit(1)
    open(f"{outdir}/list.txt", "a").write(r.stdout)
    rel = os.path.relpath(os.path.abspath(outdir), "code")
    print(json.dumps(["gen/bench2", f"{rel}/list.txt"] + [f"{rel}/" + x.split(":")[0] for x in open(f"{outdir}/list.txt").read().split()]))
    print(json.dumps([f"{rel}/" + n for n in names]))
```

```python
import sys

NAME = "standalone__instancenorm__sampling_kernel"
MB4 = 4 << 20

HEADER = """; Kernarg layout for this problem (48 bytes, ptrs only, base s[0:1]):
; @launch grid=(256,1,1) block=(512,1,1) lds=0
;
;
;
"""


def gen(pre=6, D=3, Dend=2, efrom=5, tp=2, wtmo=256, nl=8, extra=0, ool=0, perm=1234567, hp=0, D0=2, h0=0, h1=0):
    L = []
    A = L.append
    I, F, DATA, nbuf = 8, 16, 32, 3
    ld, st = " nt", " sc1"
    P = [int(c) for c in str(perm).zfill(8)]
    A(HEADER + '.amdgcn_target "amdgcn-amd-amdhsa--gfx950"')
    A(".text")
    A(f".globl {NAME}")
    A(".p2align 12                                ; keeps the start-up code inside one 4 KiB fetch page")
    A(".p2align 8")
    A(f".type {NAME},@function")
    A(f"{NAME}:")
    A("    s_load_dwordx2 s[12:13], s[0:1], 0     ; x")
    A("    s_load_dwordx4 s[4:7], s[0:1], 8       ; g, b")
    A("    s_load_dwordx4 s[8:11], s[0:1], 24")
    A("    v_readfirstlane_b32 s20, v0            ; 64 * wave")
    A("    v_and_b32 v2, 63, v0")
    A("    s_cmp_ge_u32 s2, 256")
    A("    s_cbranch_scc1 L_done")
    A("    v_lshlrev_b32 v2, 4, v2")
    A("    s_lshl_b32 s32, s2, 9")
    A("    s_add_u32 s32, s32, s20")
    A("    s_lshl_b32 s32, s32, 5")
    A(f"    s_add_u32 s33, s32, {P[1]*MB4}")
    if P[0]:
        A(f"    s_add_u32 s32, s32, {P[0]*MB4}")
    A("    s_mov_b32 s14, 0x2000000               ; x descriptor s[12:15]")
    A("    s_mov_b32 s15, 0x20000")
    hashc = [
        "    ; lines to race: picked differently in every launch so that they are not special in any cache",
        "    s_getreg_b32 s23, hwreg(HW_REG_HW_ID, 0, 16)",
        "    s_lshr_b32 s22, s0, 3",
        "    s_add_u32 s22, s22, s2",
        "    s_lshl_b32 s23, s23, 16",
        "    s_xor_b32 s22, s22, s23",
        "    s_mul_i32 s22, s22, 0x9e3779b1",
        "    s_lshr_b32 s22, s22, 7",
        "    s_and_b32 s22, s22, 0xdfdfc0",
        "    s_lshl_b32 s23, s2, 13",
        "    s_and_b32 s23, s23, 8192",
        "    s_or_b32 s22, s22, s23",
        "    s_bitset1_b32 s22, 24",
        "    s_xor_b32 s23, s22, 8192",
        "    s_mov_b32 s19, -1",
    ]
    if not ool:
        for q in hashc: A(q)
    A("    s_lshl_b32 s27, s20, 2")
    A(f"    s_or_b32 s27, s27, s2")
    A(f"    s_cmp_ge_u32 s27, {nl}")
    if ool:
        A("    s_cbranch_scc0 L_race")
        A("    s_waitcnt lgkmcnt(0)")
        A("L_np:")
    else:
        A("    s_waitcnt lgkmcnt(0)")
        A("    s_cbranch_scc1 L_np")
        A("    s_load_dword s18, s[12:13], s22 glc")
        A("    s_load_dword s19, s[12:13], s23 glc")
        A("L_np:")
    ops = []
    nxt = [0]
    known = [3]

    def buf(h):
        return DATA + ((h // 2) % nbuf) * 8 + (h & 1) * 4

    def load(h):
        b = buf(h)
        A(f"    buffer_load_dwordx4 v[{b}:{b+3}], v2, s[12:15], s{32 + h//2} offen" + (" offset:1024" if h & 1 else "") + ld)
        ops.append(("l", h))

    def wait(tag):
        A(f"    s_waitcnt vmcnt({len(ops) - 1 - ops.index(tag)})")

    def upto(h):
        while nxt[0] <= min(h, 2 * I - 1, known[0]):
            load(nxt[0]); nxt[0] += 1

    upto(1)
    A("    s_cmp_lt_u32 s20, 256")
    A("    s_cbranch_scc1 L_pd")
    A("    s_setprio 1")
    A("L_pd:")
    upto(D0 - 1)
    setup = [
        "    s_mov_b32 s28, s8",
        "    s_mov_b32 s29, s9",
        "    s_mov_b32 s30, 0x2000000",
        "    s_mov_b32 s31, 0x20000",
        "    s_mov_b32 s25, 0x44800000              ; 1024.0",
        "    s_mov_b32 s26, 0xffff0000",
        "    v_mov_b32 v4, 0xba800000               ; -1/1024",
        "    v_mov_b32 v5, 0x3727c5ac               ; 1e-5",
        "    v_mov_b32 v3, 0",
        "    v_mov_b32 v14, 0x3f80",
        "    v_mov_b32 v15, 0x3f800000",
        "    s_bitcmp0_b32 s20, 6",
        "    s_cselect_b32 s24, 16, 0",
        "    s_getreg_b32 s21, hwreg(HW_REG_XCC_ID, 0, 2)",
        "    s_lshr_b32 s44, s22, 11",
        "    s_and_b32 s44, s44, 4",
        "    s_or_b32 s44, s44, s21",
        "    s_sub_u32 s44, s44, s2",
        "    s_and_b32 s44, s44, 7",
        "    s_or_b32 s44, s44, 8",
        "    s_mov_b32 s45, 0",
        "    s_xor_b32 s46, s44, 4",
        "    s_mov_b32 s47, 0",
    ]
    for q in setup[:pre]: A(q)
    A("    s_waitcnt lgkmcnt(1)")
    for q in setup[pre:]: A(q)
    A(f"    s_cmp_ge_u32 s27, {nl}")
    A("    s_cbranch_scc1 L_r0")
    A("    s_cmp_eq_u32 s19, -1")
    A("    s_cbranch_scc0 L_r0")
    A("    s_atomic_cmpswap s[44:45], s[10:11], 0x0")
    A("    s_mov_b32 s46, s44")
    if ool:
        A("    s_branch L_r0")
        A("L_race:")
        for q in hashc: A(q)
        A("    s_waitcnt lgkmcnt(0)")
        A("    s_load_dword s18, s[12:13], s22 glc")
        A("    s_load_dword s19, s[12:13], s23 glc")
        A("    s_branch L_np")

    RED = ["row_ror:8 row_mask:0xf bank_mask:0xf", "row_ror:4 row_mask:0xf bank_mask:0xf",
           "row_ror:2 row_mask:0xf bank_mask:0xf", "row_ror:1 row_mask:0xf bank_mask:0xf",
           "row_bcast:15 row_mask:0xa bank_mask:0xf", "row_bcast:31 row_mask:0xc bank_mask:0xf"]

    nst = 0
    held = {}
    for it in range(I):
        b = buf(2 * it)
        A(f"L_r{it}:                                      ; ---------------- round {it}")
        newp = it in (0, 2)
        if newp:
            A(f"    s_lshr_b32 s21, s{32+it}, 10")
            A("    s_and_b32 s21, s21, 0x3fc")
            A("    s_load_dword s40, s[4:5], s21")
            A("    s_load_dword s41, s[6:7], s21          ; b")
        if it >= 2:
            for r in (it + 2, it + 3) if it == 2 else (it + 3,):
                if r < I:
                    A(f"    s_add_u32 s{32+r}, s34, {((P[r]-P[2])*MB4) & 0xffffffff}")
        d = Dend if it >= efrom else D
        for u in range(2):
            wait(("l", 2 * it + u))
            if u == 0:
                A(f"    v_readfirstlane_b32 s16, v{b}")
            upto(2 * it + u + d)
            if u == 0:
                A("    s_lshl_b32 s16, s16, 16                ; c")
            ks = range(4 * u, 4 * u + 4)
            for k in ks:
                A(f"    v_dot2_f32_bf16 v{F+2*k}, v{b+k}, v14, s16 neg_lo:[0,0,1]" + ("   ; d = x - c" if k == 0 else ""))
                A(f"    v_dot2_f32_bf16 v{F+2*k+1}, v{b+k}, v15, s16 neg_lo:[0,0,1]")
            for k in ks:
                f = F + 2 * k
                if k == 0:
                    A(f"    v_pk_mul_f32 v[8:9], v[{f}:{f+1}], v[{f}:{f+1}]")
                elif k == 1:
                    A(f"    v_pk_add_f32 v[6:7], v[{F}:{F+1}], v[{f}:{f+1}]")
                    A(f"    v_pk_fma_f32 v[8:9], v[{f}:{f+1}], v[{f}:{f+1}], v[8:9]")
                else:
                    A(f"    v_pk_add_f32 v[6:7], v[6:7], v[{f}:{f+1}]")
                    A(f"    v_pk_fma_f32 v[8:9], v[{f}:{f+1}], v[{f}:{f+1}], v[8:9]")
        A("    v_add_f32 v6, v6, v7")
        A("    v_add_f32 v8, v8, v9")
        if newp:
            fill = ["    v_mov_b32 v10, s16", "    s_waitcnt lgkmcnt(0)", "    s_lshl_b32 s40, s40, s24", "    s_lshl_b32 s41, s41, s24",
                    "    s_and_b32 s40, s40, s26", "    s_and_b32 s41, s41, s26"]
        else:
            fill = ["    v_mov_b32 v10, s16"] + ["    s_nop 0"] * 5
        for ctl, fl in zip(RED, fill):
            A(fl)
            A(f"    v_add_f32_dpp v6, v6, v6 {ctl}")
            A(f"    v_add_f32_dpp v8, v8, v8 {ctl}")
        A("    v_readlane_b32 s42, v6, 63             ; S1")
        A("    v_readlane_b32 s43, v8, 63             ; S2")
        A("    s_nop 0")
        A("    v_fma_f32 v6, s42, -v4, v10            ; mean")
        A("    v_add_f32 v7, s42, s42")
        A("    v_cvt_pk_bf16_f32 v6, 0, v6")
        A("    v_sub_f32 v6, v6, v10                  ; e")
        A("    v_fma_f32 v7, v6, s25, -v7")
        A("    v_fma_f32 v8, v6, v7, s43              ; 1024 var")
        A("    v_cvt_pk_bf16_f32 v8, 0, v8")
        A("    v_fma_f32 v8, v8, -v4, v5              ; var + 1e-5")
        A("    v_cvt_pk_bf16_f32 v8, 0, v8")
        A("    v_sqrt_f32 v8, v8")
        A("    s_nop 0")
        A("    v_cvt_pk_bf16_f32 v8, 0, v8            ; std")
        A("    v_rcp_f32 v8, v8")
        A("    s_nop 0")
        A("    v_mul_f32 v12, s40, v8                 ; g / std")
        A("    v_fma_f32 v13, -v6, v12, s41           ; b - e g / std")
        if it == 0:
            A("    s_load_dword s22, s[10:11], 0x0")
        for h in range(2):
            for j in range(4):
                f = F + 2 * (4 * h + j)
                A(f"    v_pk_fma_f32 v[{f}:{f+1}], v[{f}:{f+1}], v[12:13], v[12:13] op_sel:[0,0,1] op_sel_hi:[1,0,1]")
            hold = {0: h0, 1: h1}.get(it, 0)
            rel = (hold // 10 if h == 0 else hold % 10)
            if rel > it:
                yb = 56 + 8 * it
                for j in range(4):
                    k = 4 * h + j
                    A(f"    v_cvt_pk_bf16_f32 v{yb+k}, v{F+2*k}, v{F+2*k+1}")
                held.setdefault(rel, []).append((it, h, yb + 4 * h)); nst += 1
                continue
            for j in range(4):
                k = 4 * h + j
                A(f"    v_cvt_pk_bf16_f32 v{b+k}, v{F+2*k}, v{F+2*k+1}")
            stf = "" if (nst >= 2 * I - tp or nst < hp) else st
            A(f"    buffer_store_dwordx4 v[{b+4*h}:{b+4*h+3}], v2, s[28:31], s{32+it} offen" + (" offset:1024" if h else "") + stf)
            ops.append(("s", it, h)); nst += 1
        for (r_, h_, reg) in held.get(it, []):
            A(f"    buffer_store_dwordx4 v[{reg}:{reg+3}], v2, s[28:31], s{32+r_} offen" + (" offset:1024" if h_ else "") + st)
            ops.append(("s", r_, h_))
        if it == 0:
            A("    s_lshr_b32 s21, s20, 6                 ; w")
            A("    s_and_b32 s23, s21, 4")
            A("    s_add_u32 s23, s23, s21")
            A("    s_and_b32 s21, s23, 11                 ; (w>>2)*8 + (w&3)")
            A("    s_lshr_b32 s23, s2, 3")
            A("    s_lshl_b32 s34, s23, 6")
            A("    s_or_b32 s34, s34, s21")
            A("    s_waitcnt lgkmcnt(0)")
            A("    s_cmp_eq_u32 s22, 0")
            A("    s_cbranch_scc1 L_slow")
            A("L_got:")
            A("    s_add_u32 s22, s22, s2")
            A("    s_lshr_b32 s23, s2, 5")
            A("    s_xor_b32 s23, s23, s22")
            A("    s_and_b32 s23, s23, 4")
            A("    s_or_b32 s34, s34, s23")
            A("    s_and_b32 s22, s22, 3")
            A("    s_lshl_b32 s22, s22, 4")
            A("    s_or_b32 s34, s34, s22")
            A("    s_lshl_b32 s34, s34, 11")
            A(f"    s_add_u32 s34, s34, {P[2]*MB4}")
            A(f"    s_add_u32 s35, s34, {((P[3]-P[2])*MB4) & 0xffffffff}")
            known[0] = 99
            upto(2 * it + 1 + d)
        upto(2 * it + 3)
    A("L_done:")
    A("    s_endpgm")
    A("L_slow:                                    ; k was not there yet")
    A(f"    s_cmp_ge_u32 s27, {nl}")
    A("    s_cbranch_scc1 L_poll0")
    A("    s_atomic_cmpswap s[46:47], s[10:11], 0x0")
    A("L_poll0:")
    A(f"    s_movk_i32 s23, {wtmo}")
    A("L_poll:")
    A("    global_load_dword v1, v3, s[10:11] sc1")
    A("    s_waitcnt vmcnt(0)")
    A("    v_readfirstlane_b32 s22, v1")
    A("    s_cmp_lg_u32 s22, 0")
    A("    s_cbranch_scc1 L_got")
    A("    s_sub_u32 s23, s23, 1")
    A("    s_cmp_lg_u32 s23, 0")
    A("    s_cbranch_scc1 L_poll")
    A("    s_mov_b32 s22, 8")
    A("    s_atomic_cmpswap s[22:23], s[10:11], 0x0 glc")
    A("    s_waitcnt lgkmcnt(0)")
    A("    s_max_u32 s22, s22, 8")
    A("    s_branch L_got")
    nv = DATA + nbuf * 8 + (16 if h1 else 8 if h0 else 0)
    A('.section .rodata,"a"')
    A(".p2align 6")
    A(f".amdhsa_kernel {NAME}")
    A(f"  .amdhsa_next_free_vgpr {nv}")
    A("  .amdhsa_next_free_sgpr 48")
    A(f"  .amdhsa_accum_offset {(nv+3)//4*4}")
    A("  .amdhsa_group_segment_fixed_size 0")
    A("  .amdhsa_kernarg_size 48")
    A("  .amdhsa_user_sgpr_count 2")
    A("  .amdhsa_user_sgpr_kernarg_segment_ptr 1")
    A("  .amdhsa_system_sgpr_workgroup_id_x 1")
    A("  .amdhsa_float_denorm_mode_32 3")
    A(".end_amdhsa_kernel")
    return "\n".join(L) + "\n"


if __name__ == "__main__":
    import os, json, subprocess
    outdir = sys.argv[1]
    os.makedirs(outdir, exist_ok=True)
    names = []
    for sp in sys.argv[2:]:
        kw = {k: int(v, 0) for k, v in (kv.split("=") for kv in sp.split(",") if kv)}
        fn = "f_" + sp.replace("=", "").replace(",", "_") + ".s"
        open(f"{outdir}/{fn}", "w").write(gen(**kw))
        names.append(fn)
    r = subprocess.run(["python", "build.py"] + names, cwd=outdir, capture_output=True, text=True)
    if r.returncode or r.stderr:
        print(r.stdout, r.stderr)
        if r.returncode: sys.exit(1)
    open(f"{outdir}/list.txt", "a").write(r.stdout)
    rel = os.path.relpath(os.path.abspath(outdir), "code")
    print(json.dumps(["gen/bench2", f"{rel}/list.txt"] + [f"{rel}/" + x.split(":")[0] for x in open(f"{outdir}/list.txt").read().split()]))
    print(json.dumps([f"{rel}/" + n for n in names]))
```

```python
import sys, os
sys.path.insert(0,'.')
from gen_final import gen
def mk(which, wg, wave=0):
    src = gen()
    src = src.replace("    s_load_dwordx2 s[12:13], s[0:1], 0     ; x\n", "    s_memrealtime s[50:51]\n    s_load_dwordx2 s[12:13], s[0:1], 0     ; x\n")
    if which == "karg":
        src = src.replace("L_np:\n", "L_np:\n    s_memrealtime s[52:53]\n", 1).replace("s_waitcnt lgkmcnt(1) ", "s_waitcnt lgkmcnt(1) ")
    if which == "gb":
        src = src.replace("    s_load_dword s41, s[6:7], s21          ; b\n", "    s_load_dword s41, s[6:7], s21          ; b\n    s_waitcnt lgkmcnt(0)\n    s_memrealtime s[52:53]\n", 1)
    if which == "row0":
        src = src.replace("    s_waitcnt vmcnt(2)\n", "    s_waitcnt vmcnt(2)\n    s_memrealtime s[52:53]\n", 1)
    if which == "got":
        src = src.replace("L_got:\n", "L_got:\n    s_memrealtime s[52:53]\n", 1)
    if which == "end":
        src = src.replace("L_done:\n", "    s_waitcnt vmcnt(0)\n    s_memrealtime s[52:53]\nL_done:\n", 1)
    tail = f"""
    s_waitcnt vmcnt(0) lgkmcnt(0)
    s_cmp_lg_u32 s27, {wg + 256*wave}
    s_cbranch_scc1 L_done
    s_sub_u32 s82, s52, s50
    s_mul_i32 s82, s82, 100
    s_add_u32 s82, s82, 5000
L_fin:
    s_sleep 2
    s_memrealtime s[64:65]
    s_waitcnt lgkmcnt(0)
    s_sub_u32 s64, s64, s50
    s_cmp_lt_u32 s64, s82
    s_cbranch_scc1 L_fin
"""
    return src.replace("L_done:\n", tail + "L_done:\n").replace("next_free_sgpr 48", "next_free_sgpr 96")
os.makedirs("../h", exist_ok=True)
for w in ("karg","gb","row0","got","end"):
    open(f"../h/d10_{w}.s","w").write(mk(w, 100))
open(f"../h/d10_got13.s","w").write(mk("got", 13))
```

```python
import sys

NAME = "standalone__instancenorm__sampling_kernel"
MB4 = 4 << 20

HEADER = """; Kernarg layout for this problem (48 bytes, ptrs only, base s[0:1]):
; @launch grid=(256,1,1) block=(512,1,1) lds=0
;
;
;
"""


def gen(pre=6, D=3, Dend=2, efrom=5, tp=2, wtmo=256, nl=8, extra=0, ool=0, perm=1234567, hp=0, D0=2, h0=0, h1=0, ge=2, gl=1, tw=0):
    L = []
    A = L.append
    I, F, DATA, nbuf = 8, 16, 32, 3
    ld, st = " nt", " sc1"
    P = [int(c) for c in str(perm).zfill(8)]
    A(HEADER + '.amdgcn_target "amdgcn-amd-amdhsa--gfx950"')
    A(".text")
    A(f".globl {NAME}")
    A(".p2align 12                                ; keeps the start-up code inside one 4 KiB fetch page")
    A(".p2align 8")
    A(f".type {NAME},@function")
    A(f"{NAME}:")
    A("    s_load_dwordx2 s[12:13], s[0:1], 0     ; x")
    A("    s_load_dwordx4 s[4:7], s[0:1], 8       ; g, b")
    A("    s_load_dwordx4 s[8:11], s[0:1], 24")
    A("    v_readfirstlane_b32 s20, v0            ; 64 * wave")
    A("    v_and_b32 v2, 63, v0")
    A("    s_cmp_ge_u32 s2, 256")
    A("    s_cbranch_scc1 L_done")
    A("    v_lshlrev_b32 v2, 4, v2")
    A("    s_lshl_b32 s32, s2, 9")
    A("    s_add_u32 s32, s32, s20")
    A("    s_lshl_b32 s32, s32, 5")
    A(f"    s_add_u32 s33, s32, {P[1]*MB4}")
    if P[0]:
        A(f"    s_add_u32 s32, s32, {P[0]*MB4}")
    A("    s_mov_b32 s14, 0x2000000               ; x descriptor s[12:15]")
    A("    s_mov_b32 s15, 0x20000")
    hashc = [
        "    ; lines to race: picked differently in every launch so that they are not special in any cache",
        "    s_getreg_b32 s23, hwreg(HW_REG_HW_ID, 0, 16)",
        "    s_lshr_b32 s22, s0, 3",
        "    s_add_u32 s22, s22, s2",
        "    s_lshl_b32 s23, s23, 16",
        "    s_xor_b32 s22, s22, s23",
        "    s_mul_i32 s22, s22, 0x9e3779b1",
        "    s_lshr_b32 s22, s22, 7",
        "    s_and_b32 s22, s22, 0xdfdfc0",
        "    s_lshl_b32 s23, s2, 13",
        "    s_and_b32 s23, s23, 8192",
        "    s_or_b32 s22, s22, s23",
        "    s_bitset1_b32 s22, 24",
        "    s_xor_b32 s23, s22, 8192",
        "    s_mov_b32 s19, -1",
    ]
    if not ool:
        for q in hashc: A(q)
    if ge:
        A("    s_lshr_b32 s17, s32, 10")
        A("    s_and_b32 s17, s17, 0x3fc")
    A("    s_lshl_b32 s27, s20, 2")
    A(f"    s_or_b32 s27, s27, s2")
    A(f"    s_cmp_ge_u32 s27, {nl}")
    if ool:
        A("    s_cbranch_scc0 L_race")
        A("    s_waitcnt lgkmcnt(0)")
        A("L_np:")
    else:
        A("    s_waitcnt lgkmcnt(0)")
        A("    s_cbranch_scc1 L_np")
        A("    s_load_dword s18, s[12:13], s22 glc")
        A("    s_load_dword s19, s[12:13], s23 glc")
        if ge == 1:
            A("    s_branch L_np2")
        A("L_np:")
        if ge == 1:
            A("    s_load_dword s40, s[4:5], s17")
            A("    s_load_dword s41, s[6:7], s17          ; b")
            A("L_np2:")
    ops = []
    nxt = [0]
    known = [3]

    def buf(h):
        return DATA + ((h // 2) % nbuf) * 8 + (h & 1) * 4

    def load(h):
        b = buf(h)
        A(f"    buffer_load_dwordx4 v[{b}:{b+3}], v2, s[12:15], s{32 + h//2} offen" + (" offset:1024" if h & 1 else "") + ld)
        ops.append(("l", h))

    def wait(tag):
        A(f"    s_waitcnt vmcnt({len(ops) - 1 - ops.index(tag)})")

    def upto(h):
        while nxt[0] <= min(h, 2 * I - 1, known[0]):
            load(nxt[0]); nxt[0] += 1

    upto(1)
    if tw & 2:
        A("    global_load_dword v1, v2, s[8:9]")
        L.pop()
        A("    v_mov_b32 v1, s32")
        A("    global_load_dword v1, v1, s[8:9] nt")
        ops.append(("t",))
    if ge == 2:
        A("    s_cbranch_scc0 L_np2")
        A("    s_load_dword s40, s[4:5], s17")
        A("    s_load_dword s41, s[6:7], s17          ; b")
        A("L_np2:")
    A("    s_cmp_lt_u32 s20, 256")
    A("    s_cbranch_scc1 L_pd")
    A("    s_setprio 1")
    if tw & 1:
        A("    s_cmp_lg_u32 s20, 448")
        A("    s_cbranch_scc1 L_pd")
        A("    s_lshr_b32 s21, s2, 3")
        A("    s_cmp_lt_u32 s21, 16")
        A("    s_cselect_b32 s36, s12, s8")
        A("    s_cselect_b32 s37, s13, s9")
        A("    s_and_b32 s21, s21, 15")
        A("    s_lshl_b32 s21, s21, 21")
        A("    s_add_u32 s21, s21, 0x100000")
        A("    s_load_dword s18, s[36:37], s21")
    A("L_pd:")
    upto(D0 - 1)
    setup = [
        "    s_mov_b32 s28, s8",
        "    s_mov_b32 s29, s9",
        "    s_mov_b32 s30, 0x2000000",
        "    s_mov_b32 s31, 0x20000",
        "    s_mov_b32 s25, 0x44800000              ; 1024.0",
        "    s_mov_b32 s26, 0xffff0000",
        "    v_mov_b32 v4, 0xba800000               ; -1/1024",
        "    v_mov_b32 v5, 0x3727c5ac               ; 1e-5",
        "    v_mov_b32 v3, 0",
        "    v_mov_b32 v14, 0x3f80",
        "    v_mov_b32 v15, 0x3f800000",
        "    s_bitcmp0_b32 s20, 6",
        "    s_cselect_b32 s24, 16, 0",
        "    s_getreg_b32 s21, hwreg(HW_REG_XCC_ID, 0, 2)",
        "    s_lshr_b32 s44, s22, 11",
        "    s_and_b32 s44, s44, 4",
        "    s_or_b32 s44, s44, s21",
        "    s_sub_u32 s44, s44, s2",
        "    s_and_b32 s44, s44, 7",
        "    s_or_b32 s44, s44, 8",
        "    s_mov_b32 s45, 0",
        "    s_xor_b32 s46, s44, 4",
        "    s_mov_b32 s47, 0",
    ]
    if not ge:
        for q in setup[:pre]: A(q)
        A("    s_waitcnt lgkmcnt(1)")
        for q in setup[pre:]: A(q)
        A(f"    s_cmp_ge_u32 s27, {nl}")
        A("    s_cbranch_scc1 L_r0")
        A("    s_cmp_eq_u32 s19, -1")
        A("    s_cbranch_scc0 L_r0")
        A("    s_atomic_cmpswap s[44:45], s[10:11], 0x0")
        A("    s_mov_b32 s46, s44")
    else:
        for q in setup[:pre]: A(q)
        A(f"    s_cmp_ge_u32 s27, {nl}")
        A("    s_cbranch_scc1 L_nw")
        A("    s_waitcnt lgkmcnt(1)")
        A("L_nw:")
        for q in setup[pre:]: A(q)
        A(f"    s_cmp_ge_u32 s27, {nl}")
        A("    s_cbranch_scc1 L_r0")
        A("    s_cmp_eq_u32 s19, -1")
        A("    s_cbranch_scc0 L_nc")
        A("    s_atomic_cmpswap s[44:45], s[10:11], 0x0")
        A("    s_mov_b32 s46, s44")
        A("L_nc:")
        A("    s_load_dword s40, s[4:5], s17")
        A("    s_load_dword s41, s[6:7], s17")
    if ool:
        A("    s_branch L_r0")
        A("L_race:")
        for q in hashc: A(q)
        A("    s_waitcnt lgkmcnt(0)")
        A("    s_load_dword s18, s[12:13], s22 glc")
        A("    s_load_dword s19, s[12:13], s23 glc")
        A("    s_branch L_np")

    RED = ["row_ror:8 row_mask:0xf bank_mask:0xf", "row_ror:4 row_mask:0xf bank_mask:0xf",
           "row_ror:2 row_mask:0xf bank_mask:0xf", "row_ror:1 row_mask:0xf bank_mask:0xf",
           "row_bcast:15 row_mask:0xa bank_mask:0xf", "row_bcast:31 row_mask:0xc bank_mask:0xf"]

    nst = 0
    held = {}
    for it in range(I):
        b = buf(2 * it)
        A(f"L_r{it}:                                      ; ---------------- round {it}")
        newp = it in (0, 2)
        if newp and not (ge and it == 0):
            A(f"    s_lshr_b32 s21, s{32+it}, 10")
            A("    s_and_b32 s21, s21, 0x3fc")
            A("    s_load_dword s40, s[4:5], s21")
            A("    s_load_dword s41, s[6:7], s21          ; b")
        if it >= 2:
            for r in (it + 2, it + 3) if it == 2 else (it + 3,):
                if r < I:
                    A(f"    s_add_u32 s{32+r}, s34, {((P[r]-P[2])*MB4) & 0xffffffff}")
        d = Dend if it >= efrom else D
        for u in range(2):
            wait(("l", 2 * it + u))
            if u == 0:
                A(f"    v_readfirstlane_b32 s16, v{b}")
            upto(2 * it + u + d)
            if u == 0:
                A("    s_lshl_b32 s16, s16, 16                ; c")
            ks = range(4 * u, 4 * u + 4)
            for k in ks:
                A(f"    v_dot2_f32_bf16 v{F+2*k}, v{b+k}, v14, s16 neg_lo:[0,0,1]" + ("   ; d = x - c" if k == 0 else ""))
                A(f"    v_dot2_f32_bf16 v{F+2*k+1}, v{b+k}, v15, s16 neg_lo:[0,0,1]")
            for k in ks:
                f = F + 2 * k
                if k == 0:
                    A(f"    v_pk_mul_f32 v[8:9], v[{f}:{f+1}], v[{f}:{f+1}]")
                elif k == 1:
                    A(f"    v_pk_add_f32 v[6:7], v[{F}:{F+1}], v[{f}:{f+1}]")
                    A(f"    v_pk_fma_f32 v[8:9], v[{f}:{f+1}], v[{f}:{f+1}], v[8:9]")
                else:
                    A(f"    v_pk_add_f32 v[6:7], v[6:7], v[{f}:{f+1}]")
                    A(f"    v_pk_fma_f32 v[8:9], v[{f}:{f+1}], v[{f}:{f+1}], v[8:9]")
        A("    v_add_f32 v6, v6, v7")
        A("    v_add_f32 v8, v8, v9")
        if newp:
            fill = ["    v_mov_b32 v10, s16", "    s_waitcnt lgkmcnt(0)", "    s_lshl_b32 s40, s40, s24", "    s_lshl_b32 s41, s41, s24",
                    "    s_and_b32 s40, s40, s26", "    s_and_b32 s41, s41, s26"]
        else:
            fill = ["    v_mov_b32 v10, s16"] + ["    s_nop 0"] * 5
        for ctl, fl in zip(RED, fill):
            A(fl)
            A(f"    v_add_f32_dpp v6, v6, v6 {ctl}")
            A(f"    v_add_f32_dpp v8, v8, v8 {ctl}")
        A("    v_readlane_b32 s42, v6, 63             ; S1")
        A("    v_readlane_b32 s43, v8, 63             ; S2")
        A("    s_nop 0")
        A("    v_fma_f32 v6, s42, -v4, v10            ; mean")
        A("    v_add_f32 v7, s42, s42")
        A("    v_cvt_pk_bf16_f32 v6, 0, v6")
        A("    v_sub_f32 v6, v6, v10                  ; e")
        A("    v_fma_f32 v7, v6, s25, -v7")
        A("    v_fma_f32 v8, v6, v7, s43              ; 1024 var")
        A("    v_cvt_pk_bf16_f32 v8, 0, v8")
        A("    v_fma_f32 v8, v8, -v4, v5              ; var + 1e-5")
        A("    v_cvt_pk_bf16_f32 v8, 0, v8")
        A("    v_sqrt_f32 v8, v8")
        A("    s_nop 0")
        A("    v_cvt_pk_bf16_f32 v8, 0, v8            ; std")
        A("    v_rcp_f32 v8, v8")
        A("    s_nop 0")
        A("    v_mul_f32 v12, s40, v8                 ; g / std")
        A("    v_fma_f32 v13, -v6, v12, s41           ; b - e g / std")
        if it == 0 and gl == 0:
            A("    s_load_dword s22, s[10:11], 0x0")
        for h in range(2):
            for j in range(4):
                f = F + 2 * (4 * h + j)
                A(f"    v_pk_fma_f32 v[{f}:{f+1}], v[{f}:{f+1}], v[12:13], v[12:13] op_sel:[0,0,1] op_sel_hi:[1,0,1]")
            hold = {0: h0, 1: h1}.get(it, 0)
            rel = (hold // 10 if h == 0 else hold % 10)
            if rel > it:
                yb = 56 + 8 * it
                for j in range(4):
                    k = 4 * h + j
                    A(f"    v_cvt_pk_bf16_f32 v{yb+k}, v{F+2*k}, v{F+2*k+1}")
                held.setdefault(rel, []).append((it, h, yb + 4 * h)); nst += 1
                continue
            for j in range(4):
                k = 4 * h + j
                A(f"    v_cvt_pk_bf16_f32 v{b+k}, v{F+2*k}, v{F+2*k+1}")
            stf = "" if (nst >= 2 * I - tp or nst < hp) else st
            A(f"    buffer_store_dwordx4 v[{b+4*h}:{b+4*h+3}], v2, s[28:31], s{32+it} offen" + (" offset:1024" if h else "") + stf)
            ops.append(("s", it, h)); nst += 1
        for (r_, h_, reg) in held.get(it, []):
            A(f"    buffer_store_dwordx4 v[{reg}:{reg+3}], v2, s[28:31], s{32+r_} offen" + (" offset:1024" if h_ else "") + st)
            ops.append(("s", r_, h_))
        if it == 0:
            if gl == 1:
                A("    s_load_dword s22, s[10:11], 0x0")
            A("    s_lshr_b32 s21, s20, 6                 ; w")
            A("    s_and_b32 s23, s21, 4")
            A("    s_add_u32 s23, s23, s21")
            A("    s_and_b32 s21, s23, 11                 ; (w>>2)*8 + (w&3)")
            A("    s_lshr_b32 s23, s2, 3")
            A("    s_lshl_b32 s34, s23, 6")
            A("    s_or_b32 s34, s34, s21")
            A("    s_waitcnt lgkmcnt(0)")
            A("    s_cmp_eq_u32 s22, 0")
            A("    s_cbranch_scc1 L_slow")
            A("L_got:")
            A("    s_add_u32 s22, s22, s2")
            A("    s_lshr_b32 s23, s2, 5")
            A("    s_xor_b32 s23, s23, s22")
            A("    s_and_b32 s23, s23, 4")
            A("    s_or_b32 s34, s34, s23")
            A("    s_and_b32 s22, s22, 3")
            A("    s_lshl_b32 s22, s22, 4")
            A("    s_or_b32 s34, s34, s22")
            A("    s_lshl_b32 s34, s34, 11")
            A(f"    s_add_u32 s34, s34, {P[2]*MB4}")
            A(f"    s_add_u32 s35, s34, {((P[3]-P[2])*MB4) & 0xffffffff}")
            known[0] = 99
            upto(2 * it + 1 + d)
        upto(2 * it + 3)
    A("L_done:")
    A("    s_endpgm")
    A("L_slow:                                    ; k was not there yet")
    A(f"    s_cmp_ge_u32 s27, {nl}")
    A("    s_cbranch_scc1 L_poll0")
    A("    s_atomic_cmpswap s[46:47], s[10:11], 0x0")
    A("L_poll0:")
    A(f"    s_movk_i32 s23, {wtmo}")
    A("L_poll:")
    A("    global_load_dword v1, v3, s[10:11] sc1")
    A("    s_waitcnt vmcnt(0)")
    A("    v_readfirstlane_b32 s22, v1")
    A("    s_cmp_lg_u32 s22, 0")
    A("    s_cbranch_scc1 L_got")
    A("    s_sub_u32 s23, s23, 1")
    A("    s_cmp_lg_u32 s23, 0")
    A("    s_cbranch_scc1 L_poll")
    A("    s_mov_b32 s22, 8")
    A("    s_atomic_cmpswap s[22:23], s[10:11], 0x0 glc")
    A("    s_waitcnt lgkmcnt(0)")
    A("    s_max_u32 s22, s22, 8")
    A("    s_branch L_got")
    nv = DATA + nbuf * 8 + (16 if h1 else 8 if h0 else 0)
    A('.section .rodata,"a"')
    A(".p2align 6")
    A(f".amdhsa_kernel {NAME}")
    A(f"  .amdhsa_next_free_vgpr {nv}")
    A("  .amdhsa_next_free_sgpr 48")
    A(f"  .amdhsa_accum_offset {(nv+3)//4*4}")
    A("  .amdhsa_group_segment_fixed_size 0")
    A("  .amdhsa_kernarg_size 48")
    A("  .amdhsa_user_sgpr_count 2")
    A("  .amdhsa_user_sgpr_kernarg_segment_ptr 1")
    A("  .amdhsa_system_sgpr_workgroup_id_x 1")
    A("  .amdhsa_float_denorm_mode_32 3")
    A(".end_amdhsa_kernel")
    return "\n".join(L) + "\n"


if __name__ == "__main__":
    import os, json, subprocess
    outdir = sys.argv[1]
    os.makedirs(outdir, exist_ok=True)
    names = []
    for sp in sys.argv[2:]:
        kw = {k: int(v, 0) for k, v in (kv.split("=") for kv in sp.split(",") if kv)}
        fn = "f_" + sp.replace("=", "").replace(",", "_") + ".s"
        open(f"{outdir}/{fn}", "w").write(gen(**kw))
        names.append(fn)
    r = subprocess.run(["python", "build.py"] + names, cwd=outdir, capture_output=True, text=True)
    if r.returncode or r.stderr:
        print(r.stdout, r.stderr)
        if r.returncode: sys.exit(1)
    open(f"{outdir}/list.txt", "a").write(r.stdout)
    rel = os.path.relpath(os.path.abspath(outdir), "code")
    print(json.dumps(["gen/bench2", f"{rel}/list.txt"] + [f"{rel}/" + x.split(":")[0] for x in open(f"{outdir}/list.txt").read().split()]))
    print(json.dumps([f"{rel}/" + n for n in names]))
```

```python
import sys, os
sys.path.insert(0,'.')
from gen2 import gen
def mk(kind, st=" sc1", mb=64, pol=" sc1"):
    src = gen(lpr=64, waves=8, nwg=256, P=1, loc=0, st=st)
    src = src.replace(".p2align 8\n", ".p2align 12\n", 1)
    src = src.replace("    s_load_dwordx4 s[4:7], s[0:1], 0 ", "    s_memrealtime s[50:51]\n    s_load_dwordx2 s[44:45], s[0:1], 40\n    s_load_dwordx4 s[4:7], s[0:1], 0 ")
    tail = """
    s_waitcnt vmcnt(0)
    s_mov_b32 s46, 0x10000000
    s_mov_b32 s47, 0x20000
    s_lshr_b32 s60, s32, 1          ; wave*1K
"""
    if kind in ("write", "read"):
        n = mb // 2
        op = f"buffer_store_dwordx4 v[16:19], v2, s[44:47], s60 offen{pol}" if kind == "write" else f"buffer_load_dwordx4 v[16:19], v2, s[44:47], s60 offen{pol}"
        tail += f"""
    s_mov_b32 s61, {n}
L_sw:
    {op}
    s_add_u32 s60, s60, 0x200000
    s_waitcnt vmcnt(4)
    s_sub_u32 s61, s61, 1
    s_cmp_lg_u32 s61, 0
    s_cbranch_scc1 L_sw
    s_waitcnt vmcnt(0)
"""
    tail += """
L_fin:
    s_sleep 8
    s_memrealtime s[54:55]
    s_waitcnt lgkmcnt(0)
    s_sub_u32 s54, s54, s50
    s_cmp_lt_u32 s54, 20000
    s_cbranch_scc1 L_fin
"""
    return src.replace("L_done:\n", tail + "L_done:\n").replace("next_free_sgpr 48", "next_free_sgpr 96")
os.makedirs("../h", exist_ok=True)
open("../h/d11_base.s","w").write(mk("none"))
open("../h/d11_base2.s","w").write(mk("none"))
open("../h/d11_w64.s","w").write(mk("write", mb=64))
open("../h/d11_w128.s","w").write(mk("write", mb=128))
open("../h/d11_r256.s","w").write(mk("read", mb=256, pol=""))
open("../h/d11_nt.s","w").write(mk("none", st=" sc0 sc1 nt"))
```

```python
import sys

NAME = "standalone__instancenorm__sampling_kernel"
MB4 = 4 << 20

HEADER = """; Kernarg layout for this problem (48 bytes, ptrs only, base s[0:1]):
; @launch grid=(256,1,1) block=(512,1,1) lds=0
;
;
;
"""


def gen(pre=6, D=3, Dend=2, efrom=5, tp=2, wtmo=256, nl=8, extra=0, ool=0, perm=1234567, hp=0, D0=2, h0=0, h1=0, ge=2, gl=1, tw=0, gw=0, sn=1):
    L = []
    A = L.append
    I, F, DATA, nbuf = 8, 16, 32, 3
    ld, st = " nt", " sc1"
    P = [int(c) for c in str(perm).zfill(8)]
    A(HEADER + '.amdgcn_target "amdgcn-amd-amdhsa--gfx950"')
    A(".text")
    A(f".globl {NAME}")
    A(".p2align 12                                ; keeps the start-up code inside one 4 KiB fetch page")
    A(".p2align 8")
    A(f".type {NAME},@function")
    A(f"{NAME}:")
    A("    s_load_dwordx2 s[12:13], s[0:1], 0     ; x")
    A("    s_load_dwordx4 s[4:7], s[0:1], 8       ; g, b")
    A("    s_load_dwordx4 s[8:11], s[0:1], 24")
    A("    v_readfirstlane_b32 s20, v0            ; 64 * wave")
    A("    v_and_b32 v2, 63, v0")
    A("    s_cmp_ge_u32 s2, 256")
    A("    s_cbranch_scc1 L_done")
    A("    v_lshlrev_b32 v2, 4, v2")
    A("    s_lshl_b32 s32, s2, 9")
    A("    s_add_u32 s32, s32, s20")
    A("    s_lshl_b32 s32, s32, 5")
    A(f"    s_add_u32 s33, s32, {P[1]*MB4}")
    if P[0]:
        A(f"    s_add_u32 s32, s32, {P[0]*MB4}")
    A("    s_mov_b32 s14, 0x2000000               ; x descriptor s[12:15]")
    A("    s_mov_b32 s15, 0x20000")
    hashc = [
        "    ; lines to race: picked differently in every launch so that they are not special in any cache",
        "    s_getreg_b32 s23, hwreg(HW_REG_HW_ID, 0, 16)",
        "    s_lshr_b32 s22, s0, 3",
        "    s_add_u32 s22, s22, s2",
        "    s_lshl_b32 s23, s23, 16",
        "    s_xor_b32 s22, s22, s23",
        "    s_mul_i32 s22, s22, 0x9e3779b1",
        "    s_lshr_b32 s22, s22, 7",
        "    s_and_b32 s22, s22, 0xdfdfc0",
        "    s_lshl_b32 s23, s2, 13",
        "    s_and_b32 s23, s23, 8192",
        "    s_or_b32 s22, s22, s23",
        "    s_bitset1_b32 s22, 24",
        "    s_xor_b32 s23, s22, 8192",
        "    s_mov_b32 s19, -1",
    ]
    if not ool:
        for q in hashc: A(q)
    if ge:
        A("    s_lshr_b32 s17, s32, 10")
        A("    s_and_b32 s17, s17, 0x3fc")
    A("    s_lshl_b32 s27, s20, 2")
    A(f"    s_or_b32 s27, s27, s2")
    A(f"    s_cmp_ge_u32 s27, {nl}")
    if ool:
        A("    s_cbranch_scc0 L_race")
        A("    s_waitcnt lgkmcnt(0)")
        A("L_np:")
    else:
        A("    s_waitcnt lgkmcnt(0)")
        A("    s_cbranch_scc1 L_np")
        A("    s_load_dword s18, s[12:13], s22 glc")
        A("    s_load_dword s19, s[12:13], s23 glc")
        if ge == 1:
            A("    s_branch L_np2")
        A("L_np:")
        if ge == 1:
            A("    s_load_dword s40, s[4:5], s17")
            A("    s_load_dword s41, s[6:7], s17          ; b")
            A("L_np2:")
    ops = []
    nxt = [0]
    known = [3]

    def buf(h):
        return DATA + ((h // 2) % nbuf) * 8 + (h & 1) * 4

    def load(h):
        b = buf(h)
        A(f"    buffer_load_dwordx4 v[{b}:{b+3}], v2, s[12:15], s{32 + h//2} offen" + (" offset:1024" if h & 1 else "") + ld)
        ops.append(("l", h))

    def wait(tag):
        A(f"    s_waitcnt vmcnt({len(ops) - 1 - ops.index(tag)})")

    def upto(h):
        while nxt[0] <= min(h, 2 * I - 1, known[0]):
            load(nxt[0]); nxt[0] += 1

    upto(1)
    if tw & 2:
        A("    global_load_dword v1, v2, s[8:9]")
        L.pop()
        A("    v_mov_b32 v1, s32")
        A("    global_load_dword v1, v1, s[8:9] nt")
        ops.append(("t",))
    if ge == 2:
        A("    s_cbranch_scc0 L_np2")
        A("    s_load_dword s40, s[4:5], s17")
        A("    s_load_dword s41, s[6:7], s17          ; b")
        A("L_np2:")
    A("    s_cmp_lt_u32 s20, 256")
    A("    s_cbranch_scc1 L_pd")
    A("    s_setprio 1")
    if tw & 1:
        A("    s_cmp_lg_u32 s20, 448")
        A("    s_cbranch_scc1 L_pd")
        A("    s_lshr_b32 s21, s2, 3")
        A("    s_cmp_lt_u32 s21, 16")
        A("    s_cselect_b32 s36, s12, s8")
        A("    s_cselect_b32 s37, s13, s9")
        A("    s_and_b32 s21, s21, 15")
        A("    s_lshl_b32 s21, s21, 21")
        A("    s_add_u32 s21, s21, 0x100000")
        A("    s_load_dword s18, s[36:37], s21")
    A("L_pd:")
    upto(D0 - 1)
    setup = [
        "    s_mov_b32 s28, s8",
        "    s_mov_b32 s29, s9",
        "    s_mov_b32 s30, 0x2000000",
        "    s_mov_b32 s31, 0x20000",
        "    s_mov_b32 s25, 0x44800000              ; 1024.0",
        "    s_mov_b32 s26, 0xffff0000",
        "    v_mov_b32 v4, 0xba800000               ; -1/1024",
        "    v_mov_b32 v5, 0x3727c5ac               ; 1e-5",
        "    v_mov_b32 v3, 0",
        "    v_mov_b32 v14, 0x3f80",
        "    v_mov_b32 v15, 0x3f800000",
        "    s_bitcmp0_b32 s20, 6",
        "    s_cselect_b32 s24, 16, 0",
        "    s_getreg_b32 s21, hwreg(HW_REG_XCC_ID, 0, 2)",
        "    s_lshr_b32 s44, s22, 11",
        "    s_and_b32 s44, s44, 4",
        "    s_or_b32 s44, s44, s21",
        "    s_sub_u32 s44, s44, s2",
        "    s_and_b32 s44, s44, 7",
        "    s_or_b32 s44, s44, 8",
        "    s_mov_b32 s45, 0",
        "    s_xor_b32 s46, s44, 4",
        "    s_mov_b32 s47, 0",
    ]
    if not ge:
        for q in setup[:pre]: A(q)
        A("    s_waitcnt lgkmcnt(1)")
        for q in setup[pre:]: A(q)
        A(f"    s_cmp_ge_u32 s27, {nl}")
        A("    s_cbranch_scc1 L_r0")
        A("    s_cmp_eq_u32 s19, -1")
        A("    s_cbranch_scc0 L_r0")
        A("    s_atomic_cmpswap s[44:45], s[10:11], 0x0")
        A("    s_mov_b32 s46, s44")
    else:
        for q in setup[:pre]: A(q)
        A(f"    s_cmp_ge_u32 s27, {nl}")
        A("    s_cbranch_scc1 L_nw")
        A("    s_waitcnt lgkmcnt(1)")
        A("L_nw:")
        for q in setup[pre:]: A(q)
        A(f"    s_cmp_ge_u32 s27, {nl}")
        A("    s_cbranch_scc1 L_r0")
        A("    s_cmp_eq_u32 s19, -1")
        A("    s_cbranch_scc0 L_nc")
        A("    s_atomic_cmpswap s[44:45], s[10:11], 0x0")
        A("    s_mov_b32 s46, s44")
        A("L_nc:")
        A("    s_load_dword s40, s[4:5], s17")
        A("    s_load_dword s41, s[6:7], s17")
    if ool:
        A("    s_branch L_r0")
        A("L_race:")
        for q in hashc: A(q)
        A("    s_waitcnt lgkmcnt(0)")
        A("    s_load_dword s18, s[12:13], s22 glc")
        A("    s_load_dword s19, s[12:13], s23 glc")
        A("    s_branch L_np")

    def slow():
        A("L_slow:                                    ; k was not there yet")
        A(f"    s_cmp_ge_u32 s27, {nl}")
        A("    s_cbranch_scc1 L_poll0")
        A("    s_atomic_cmpswap s[46:47], s[10:11], 0x0")
        A("L_poll0:")
        A(f"    s_movk_i32 s23, {wtmo}")
        A("L_poll:")
        A("    global_load_dword v1, v3, s[10:11] sc1")
        A("    s_waitcnt vmcnt(0)")
        A("    v_readfirstlane_b32 s22, v1")
        A("    s_cmp_lg_u32 s22, 0")
        A("    s_cbranch_scc1 L_got")
        A("    s_sub_u32 s23, s23, 1")
        A("    s_cmp_lg_u32 s23, 0")
        A("    s_cbranch_scc1 L_poll")
        A("    s_mov_b32 s22, 8")
        A("    s_atomic_cmpswap s[22:23], s[10:11], 0x0 glc")
        A("    s_waitcnt lgkmcnt(0)")
        A("    s_max_u32 s22, s22, 8")
        A("    s_branch L_got")

    if sn:
        A("    s_branch L_r0")
        slow()

    RED = ["row_ror:8 row_mask:0xf bank_mask:0xf", "row_ror:4 row_mask:0xf bank_mask:0xf",
           "row_ror:2 row_mask:0xf bank_mask:0xf", "row_ror:1 row_mask:0xf bank_mask:0xf",
           "row_bcast:15 row_mask:0xa bank_mask:0xf", "row_bcast:31 row_mask:0xc bank_mask:0xf"]

    nst = 0
    held = {}
    for it in range(I):
        b = buf(2 * it)
        A(f"L_r{it}:                                      ; ---------------- round {it}")
        newp = it in (0, 2)
        if newp and not (ge and it == 0):
            A(f"    s_lshr_b32 s21, s{32+it}, 10")
            A("    s_and_b32 s21, s21, 0x3fc")
            A("    s_load_dword s40, s[4:5], s21")
            A("    s_load_dword s41, s[6:7], s21          ; b")
        if it >= 2:
            for r in (it + 2, it + 3) if it == 2 else (it + 3,):
                if r < I:
                    A(f"    s_add_u32 s{32+r}, s34, {((P[r]-P[2])*MB4) & 0xffffffff}")
        d = Dend if it >= efrom else D
        for u in range(2):
            wait(("l", 2 * it + u))
            if u == 0:
                A(f"    v_readfirstlane_b32 s16, v{b}")
            upto(2 * it + u + d)
            if u == 0:
                A("    s_lshl_b32 s16, s16, 16                ; c")
            ks = range(4 * u, 4 * u + 4)
            for k in ks:
                A(f"    v_dot2_f32_bf16 v{F+2*k}, v{b+k}, v14, s16 neg_lo:[0,0,1]" + ("   ; d = x - c" if k == 0 else ""))
                A(f"    v_dot2_f32_bf16 v{F+2*k+1}, v{b+k}, v15, s16 neg_lo:[0,0,1]")
            for k in ks:
                f = F + 2 * k
                if k == 0:
                    A(f"    v_pk_mul_f32 v[8:9], v[{f}:{f+1}], v[{f}:{f+1}]")
                elif k == 1:
                    A(f"    v_pk_add_f32 v[6:7], v[{F}:{F+1}], v[{f}:{f+1}]")
                    A(f"    v_pk_fma_f32 v[8:9], v[{f}:{f+1}], v[{f}:{f+1}], v[8:9]")
                else:
                    A(f"    v_pk_add_f32 v[6:7], v[6:7], v[{f}:{f+1}]")
                    A(f"    v_pk_fma_f32 v[8:9], v[{f}:{f+1}], v[{f}:{f+1}], v[8:9]")
        A("    v_add_f32 v6, v6, v7")
        A("    v_add_f32 v8, v8, v9")
        if newp and not gw:
            fill = ["    v_mov_b32 v10, s16", "    s_waitcnt lgkmcnt(0)", "    s_lshl_b32 s40, s40, s24", "    s_lshl_b32 s41, s41, s24",
                    "    s_and_b32 s40, s40, s26", "    s_and_b32 s41, s41, s26"]
        else:
            fill = ["    v_mov_b32 v10, s16"] + ["    s_nop 0"] * 5
        for ctl, fl in zip(RED, fill):
            A(fl)
            A(f"    v_add_f32_dpp v6, v6, v6 {ctl}")
            A(f"    v_add_f32_dpp v8, v8, v8 {ctl}")
        A("    v_readlane_b32 s42, v6, 63             ; S1")
        A("    v_readlane_b32 s43, v8, 63             ; S2")
        A("    s_nop 0")
        A("    v_fma_f32 v6, s42, -v4, v10            ; mean")
        A("    v_add_f32 v7, s42, s42")
        A("    v_cvt_pk_bf16_f32 v6, 0, v6")
        A("    v_sub_f32 v6, v6, v10                  ; e")
        A("    v_fma_f32 v7, v6, s25, -v7")
        A("    v_fma_f32 v8, v6, v7, s43              ; 1024 var")
        A("    v_cvt_pk_bf16_f32 v8, 0, v8")
        A("    v_fma_f32 v8, v8, -v4, v5              ; var + 1e-5")
        A("    v_cvt_pk_bf16_f32 v8, 0, v8")
        A("    v_sqrt_f32 v8, v8")
        A("    s_nop 0")
        A("    v_cvt_pk_bf16_f32 v8, 0, v8            ; std")
        A("    v_rcp_f32 v8, v8")
        if newp and gw:
            A("    s_waitcnt lgkmcnt(0)")
            A("    s_lshl_b32 s40, s40, s24")
            A("    s_and_b32 s40, s40, s26")
            A("    s_lshl_b32 s41, s41, s24")
            A("    s_and_b32 s41, s41, s26")
        else:
            A("    s_nop 0")
        A("    v_mul_f32 v12, s40, v8                 ; g / std")
        A("    v_fma_f32 v13, -v6, v12, s41           ; b - e g / std")
        if it == 0 and gl == 0:
            A("    s_load_dword s22, s[10:11], 0x0")
        for h in range(2):
            for j in range(4):
                f = F + 2 * (4 * h + j)
                A(f"    v_pk_fma_f32 v[{f}:{f+1}], v[{f}:{f+1}], v[12:13], v[12:13] op_sel:[0,0,1] op_sel_hi:[1,0,1]")
            hold = {0: h0, 1: h1}.get(it, 0)
            rel = (hold // 10 if h == 0 else hold % 10)
            if rel > it:
                yb = 56 + 8 * it
                for j in range(4):
                    k = 4 * h + j
                    A(f"    v_cvt_pk_bf16_f32 v{yb+k}, v{F+2*k}, v{F+2*k+1}")
                held.setdefault(rel, []).append((it, h, yb + 4 * h)); nst += 1
                continue
            for j in range(4):
                k = 4 * h + j
                A(f"    v_cvt_pk_bf16_f32 v{b+k}, v{F+2*k}, v{F+2*k+1}")
            stf = "" if (nst >= 2 * I - tp or nst < hp) else st
            A(f"    buffer_store_dwordx4 v[{b+4*h}:{b+4*h+3}], v2, s[28:31], s{32+it} offen" + (" offset:1024" if h else "") + stf)
            ops.append(("s", it, h)); nst += 1
        for (r_, h_, reg) in held.get(it, []):
            A(f"    buffer_store_dwordx4 v[{reg}:{reg+3}], v2, s[28:31], s{32+r_} offen" + (" offset:1024" if h_ else "") + st)
            ops.append(("s", r_, h_))
        if it == 0:
            if gl == 1:
                A("    s_load_dword s22, s[10:11], 0x0")
            A("    s_lshr_b32 s21, s20, 6                 ; w")
            A("    s_and_b32 s23, s21, 4")
            A("    s_add_u32 s23, s23, s21")
            A("    s_and_b32 s21, s23, 11                 ; (w>>2)*8 + (w&3)")
            A("    s_lshr_b32 s23, s2, 3")
            A("    s_lshl_b32 s34, s23, 6")
            A("    s_or_b32 s34, s34, s21")
            A("    s_waitcnt lgkmcnt(0)")
            A("    s_cmp_eq_u32 s22, 0")
            A("    s_cbranch_scc1 L_slow")
            A("L_got:")
            A("    s_add_u32 s22, s22, s2")
            A("    s_lshr_b32 s23, s2, 5")
            A("    s_xor_b32 s23, s23, s22")
            A("    s_and_b32 s23, s23, 4")
            A("    s_or_b32 s34, s34, s23")
            A("    s_and_b32 s22, s22, 3")
            A("    s_lshl_b32 s22, s22, 4")
            A("    s_or_b32 s34, s34, s22")
            A("    s_lshl_b32 s34, s34, 11")
            A(f"    s_add_u32 s34, s34, {P[2]*MB4}")
            A(f"    s_add_u32 s35, s34, {((P[3]-P[2])*MB4) & 0xffffffff}")
            known[0] = 99
            upto(2 * it + 1 + d)
        upto(2 * it + 3)
    A("L_done:")
    A("    s_endpgm")
    if not sn:
        slow()
    nv = DATA + nbuf * 8 + (16 if h1 else 8 if h0 else 0)
    A('.section .rodata,"a"')
    A(".p2align 6")
    A(f".amdhsa_kernel {NAME}")
    A(f"  .amdhsa_next_free_vgpr {nv}")
    A("  .amdhsa_next_free_sgpr 48")
    A(f"  .amdhsa_accum_offset {(nv+3)//4*4}")
    A("  .amdhsa_group_segment_fixed_size 0")
    A("  .amdhsa_kernarg_size 48")
    A("  .amdhsa_user_sgpr_count 2")
    A("  .amdhsa_user_sgpr_kernarg_segment_ptr 1")
    A("  .amdhsa_system_sgpr_workgroup_id_x 1")
    A("  .amdhsa_float_denorm_mode_32 3")
    A(".end_amdhsa_kernel")
    return "\n".join(L) + "\n"


if __name__ == "__main__":
    import os, json, subprocess
    outdir = sys.argv[1]
    os.makedirs(outdir, exist_ok=True)
    names = []
    for sp in sys.argv[2:]:
        kw = {k: int(v, 0) for k, v in (kv.split("=") for kv in sp.split(",") if kv)}
        fn = "f_" + sp.replace("=", "").replace(",", "_") + ".s"
        open(f"{outdir}/{fn}", "w").write(gen(**kw))
        names.append(fn)
    r = subprocess.run(["python", "build.py"] + names, cwd=outdir, capture_output=True, text=True)
    if r.returncode or r.stderr:
        print(r.stdout, r.stderr)
        if r.returncode: sys.exit(1)
    open(f"{outdir}/list.txt", "a").write(r.stdout)
    rel = os.path.relpath(os.path.abspath(outdir), "code")
    print(json.dumps(["gen/bench2", f"{rel}/list.txt"] + [f"{rel}/" + x.split(":")[0] for x in open(f"{outdir}/list.txt").read().split()]))
    print(json.dumps([f"{rel}/" + n for n in names]))
```

```python
import sys

NAME = "standalone__instancenorm__sampling_kernel"
MB4 = 4 << 20

HEADER = """; Kernarg layout for this problem (48 bytes, ptrs only, base s[0:1]):
; @launch grid=(256,1,1) block=(512,1,1) lds=0
;
;
;
"""


def gen(pre=6, D=3, Dend=2, efrom=5, tp=2, wtmo=256, nl=8, extra=0, ool=0, perm=1234567, hp=0, D0=2, h0=0, h1=0, ge=2, gl=1, tw=0, gw=0, sn=1, yd=0, iw=0):
    L = []
    A = L.append
    I, F, DATA, nbuf = 8, 16, 32, 3
    ld, st = " nt", " sc1"
    P = [int(c) for c in str(perm).zfill(8)]
    A(HEADER + '.amdgcn_target "amdgcn-amd-amdhsa--gfx950"')
    A(".text")
    A(f".globl {NAME}")
    A(".p2align 12                                ; keeps the start-up code inside one 4 KiB fetch page")
    A(".p2align 8")
    A(f".type {NAME},@function")
    A(f"{NAME}:")
    A("    s_load_dwordx2 s[12:13], s[0:1], 0     ; x")
    A("    s_load_dwordx4 s[4:7], s[0:1], 8       ; g, b")
    A("    s_load_dwordx4 s[8:11], s[0:1], 24")
    A("    v_readfirstlane_b32 s20, v0            ; 64 * wave")
    A("    v_and_b32 v2, 63, v0")
    A("    s_cmp_ge_u32 s2, 256")
    A("    s_cbranch_scc1 L_done")
    A("    v_lshlrev_b32 v2, 4, v2")
    A("    s_lshl_b32 s32, s2, 9")
    A("    s_add_u32 s32, s32, s20")
    A("    s_lshl_b32 s32, s32, 5")
    A(f"    s_add_u32 s33, s32, {P[1]*MB4}")
    if P[0]:
        A(f"    s_add_u32 s32, s32, {P[0]*MB4}")
    A("    s_mov_b32 s14, 0x2000000               ; x descriptor s[12:15]")
    A("    s_mov_b32 s15, 0x20000")
    hashc = [
        "    ; lines to race: picked differently in every launch so that they are not special in any cache",
        "    s_getreg_b32 s23, hwreg(HW_REG_HW_ID, 0, 16)",
        "    s_lshr_b32 s22, s0, 3",
        "    s_add_u32 s22, s22, s2",
        "    s_lshl_b32 s23, s23, 16",
        "    s_xor_b32 s22, s22, s23",
        "    s_mul_i32 s22, s22, 0x9e3779b1",
        "    s_lshr_b32 s22, s22, 7",
        "    s_and_b32 s22, s22, 0xdfdfc0",
        "    s_lshl_b32 s23, s2, 13",
        "    s_and_b32 s23, s23, 8192",
        "    s_or_b32 s22, s22, s23",
        "    s_bitset1_b32 s22, 24",
        "    s_xor_b32 s23, s22, 8192",
        "    s_mov_b32 s19, -1",
    ]
    if not ool:
        for q in hashc: A(q)
    if ge:
        A("    s_lshr_b32 s17, s32, 10")
        A("    s_and_b32 s17, s17, 0x3fc")
    IW = [int(c) for c in str(iw).zfill(4)]
    if iw:
        A("    s_mov_b64 vcc, -1")
        A("    s_cmp_lt_u32 s20, 256")
        A("    s_cbranch_scc1 L_ret")
        for w, r in enumerate(IW):
            if r:
                A(f"    s_cmp_eq_u32 s20, {64*(4+w)}")
                A(f"    s_cbranch_scc1 L_r{r}")
        A("L_ret:")
        A("    s_mov_b64 vcc, 0")
    A("    s_lshl_b32 s27, s20, 2")
    A(f"    s_or_b32 s27, s27, s2")
    A(f"    s_cmp_ge_u32 s27, {nl}")
    if ool:
        A("    s_cbranch_scc0 L_race")
        A("    s_waitcnt lgkmcnt(0)")
        A("L_np:")
    else:
        A("    s_waitcnt lgkmcnt(0)")
        A("    s_cbranch_scc1 L_np")
        A("    s_load_dword s18, s[12:13], s22 glc")
        A("    s_load_dword s19, s[12:13], s23 glc")
        if ge == 1:
            A("    s_branch L_np2")
        A("L_np:")
        if ge == 1:
            A("    s_load_dword s40, s[4:5], s17")
            A("    s_load_dword s41, s[6:7], s17          ; b")
            A("L_np2:")
    ops = []
    nxt = [0]
    known = [3]

    def buf(h):
        return DATA + ((h // 2) % nbuf) * 8 + (h & 1) * 4

    def load(h):
        b = buf(h)
        A(f"    buffer_load_dwordx4 v[{b}:{b+3}], v2, s[12:15], s{32 + h//2} offen" + (" offset:1024" if h & 1 else "") + ld)
        ops.append(("l", h))

    def wait(tag):
        A(f"    s_waitcnt vmcnt({len(ops) - 1 - ops.index(tag)})")

    def upto(h):
        while nxt[0] <= min(h, 2 * I - 1, known[0]):
            load(nxt[0]); nxt[0] += 1

    if yd:
        A("    s_cselect_b32 s21, 1, 0")
        A("    s_cmp_lt_u32 s20, 256")
        A("    s_cbranch_scc1 L_ny")
        for _ in range(yd): A("    s_nop 15")
        A("L_ny:")
        A("    s_cmp_lg_u32 s21, 0")
    upto(1)
    if tw & 2:
        A("    global_load_dword v1, v2, s[8:9]")
        L.pop()
        A("    v_mov_b32 v1, s32")
        A("    global_load_dword v1, v1, s[8:9] nt")
        ops.append(("t",))
    if ge == 2:
        A("    s_cbranch_scc0 L_np2")
        A("    s_load_dword s40, s[4:5], s17")
        A("    s_load_dword s41, s[6:7], s17          ; b")
        A("L_np2:")
    A("    s_cmp_lt_u32 s20, 256")
    A("    s_cbranch_scc1 L_pd")
    A("    s_setprio 1")
    if tw & 1:
        A("    s_cmp_lg_u32 s20, 448")
        A("    s_cbranch_scc1 L_pd")
        A("    s_lshr_b32 s21, s2, 3")
        A("    s_cmp_lt_u32 s21, 16")
        A("    s_cselect_b32 s36, s12, s8")
        A("    s_cselect_b32 s37, s13, s9")
        A("    s_and_b32 s21, s21, 15")
        A("    s_lshl_b32 s21, s21, 21")
        A("    s_add_u32 s21, s21, 0x100000")
        A("    s_load_dword s18, s[36:37], s21")
    A("L_pd:")
    upto(D0 - 1)
    setup = [
        "    s_mov_b32 s28, s8",
        "    s_mov_b32 s29, s9",
        "    s_mov_b32 s30, 0x2000000",
        "    s_mov_b32 s31, 0x20000",
        "    s_mov_b32 s25, 0x44800000              ; 1024.0",
        "    s_mov_b32 s26, 0xffff0000",
        "    v_mov_b32 v4, 0xba800000               ; -1/1024",
        "    v_mov_b32 v5, 0x3727c5ac               ; 1e-5",
        "    v_mov_b32 v3, 0",
        "    v_mov_b32 v14, 0x3f80",
        "    v_mov_b32 v15, 0x3f800000",
        "    s_bitcmp0_b32 s20, 6",
        "    s_cselect_b32 s24, 16, 0",
        "    s_getreg_b32 s21, hwreg(HW_REG_XCC_ID, 0, 2)",
        "    s_lshr_b32 s44, s22, 11",
        "    s_and_b32 s44, s44, 4",
        "    s_or_b32 s44, s44, s21",
        "    s_sub_u32 s44, s44, s2",
        "    s_and_b32 s44, s44, 7",
        "    s_or_b32 s44, s44, 8",
        "    s_mov_b32 s45, 0",
        "    s_xor_b32 s46, s44, 4",
        "    s_mov_b32 s47, 0",
    ]
    if not ge:
        for q in setup[:pre]: A(q)
        A("    s_waitcnt lgkmcnt(1)")
        for q in setup[pre:]: A(q)
        A(f"    s_cmp_ge_u32 s27, {nl}")
        A("    s_cbranch_scc1 L_r0")
        A("    s_cmp_eq_u32 s19, -1")
        A("    s_cbranch_scc0 L_r0")
        A("    s_atomic_cmpswap s[44:45], s[10:11], 0x0")
        A("    s_mov_b32 s46, s44")
    else:
        for q in setup[:pre]: A(q)
        A(f"    s_cmp_ge_u32 s27, {nl}")
        A("    s_cbranch_scc1 L_nw")
        A("    s_waitcnt lgkmcnt(1)")
        A("L_nw:")
        for q in setup[pre:]: A(q)
        A(f"    s_cmp_ge_u32 s27, {nl}")
        A("    s_cbranch_scc1 L_r0")
        A("    s_cmp_eq_u32 s19, -1")
        A("    s_cbranch_scc0 L_nc")
        A("    s_atomic_cmpswap s[44:45], s[10:11], 0x0")
        A("    s_mov_b32 s46, s44")
        A("L_nc:")
        A("    s_load_dword s40, s[4:5], s17")
        A("    s_load_dword s41, s[6:7], s17")
    if ool:
        A("    s_branch L_r0")
        A("L_race:")
        for q in hashc: A(q)
        A("    s_waitcnt lgkmcnt(0)")
        A("    s_load_dword s18, s[12:13], s22 glc")
        A("    s_load_dword s19, s[12:13], s23 glc")
        A("    s_branch L_np")

    def slow():
        A("L_slow:                                    ; k was not there yet")
        A(f"    s_cmp_ge_u32 s27, {nl}")
        A("    s_cbranch_scc1 L_poll0")
        A("    s_atomic_cmpswap s[46:47], s[10:11], 0x0")
        A("L_poll0:")
        A(f"    s_movk_i32 s23, {wtmo}")
        A("L_poll:")
        A("    global_load_dword v1, v3, s[10:11] sc1")
        A("    s_waitcnt vmcnt(0)")
        A("    v_readfirstlane_b32 s22, v1")
        A("    s_cmp_lg_u32 s22, 0")
        A("    s_cbranch_scc1 L_got")
        A("    s_sub_u32 s23, s23, 1")
        A("    s_cmp_lg_u32 s23, 0")
        A("    s_cbranch_scc1 L_poll")
        A("    s_mov_b32 s22, 8")
        A("    s_atomic_cmpswap s[22:23], s[10:11], 0x0 glc")
        A("    s_waitcnt lgkmcnt(0)")
        A("    s_max_u32 s22, s22, 8")
        A("    s_branch L_got")

    if sn:
        A("    s_branch L_r0")
        slow()

    RED = ["row_ror:8 row_mask:0xf bank_mask:0xf", "row_ror:4 row_mask:0xf bank_mask:0xf",
           "row_ror:2 row_mask:0xf bank_mask:0xf", "row_ror:1 row_mask:0xf bank_mask:0xf",
           "row_bcast:15 row_mask:0xa bank_mask:0xf", "row_bcast:31 row_mask:0xc bank_mask:0xf"]

    nst = 0
    held = {}
    for it in range(I):
        b = buf(2 * it)
        if iw and it == 3:
            A("    s_branch L_r3")
            A(".p2align 12                                ; instruction prefetch stops at 4 KiB: start a round there")
        A(f"L_r{it}:                                      ; ---------------- round {it}")
        if iw and it in IW and it:
            A("    s_cbranch_vccnz L_ret")
        newp = it in (0, 2)
        if newp and not (ge and it == 0):
            A(f"    s_lshr_b32 s21, s{32+it}, 10")
            A("    s_and_b32 s21, s21, 0x3fc")
            A("    s_load_dword s40, s[4:5], s21")
            A("    s_load_dword s41, s[6:7], s21          ; b")
        if it >= 2:
            for r in (it + 2, it + 3) if it == 2 else (it + 3,):
                if r < I:
                    A(f"    s_add_u32 s{32+r}, s34, {((P[r]-P[2])*MB4) & 0xffffffff}")
        d = Dend if it >= efrom else D
        for u in range(2):
            wait(("l", 2 * it + u))
            if u == 0:
                A(f"    v_readfirstlane_b32 s16, v{b}")
            upto(2 * it + u + d)
            if u == 0:
                A("    s_lshl_b32 s16, s16, 16                ; c")
            ks = range(4 * u, 4 * u + 4)
            for k in ks:
                A(f"    v_dot2_f32_bf16 v{F+2*k}, v{b+k}, v14, s16 neg_lo:[0,0,1]" + ("   ; d = x - c" if k == 0 else ""))
                A(f"    v_dot2_f32_bf16 v{F+2*k+1}, v{b+k}, v15, s16 neg_lo:[0,0,1]")
            for k in ks:
                f = F + 2 * k
                if k == 0:
                    A(f"    v_pk_mul_f32 v[8:9], v[{f}:{f+1}], v[{f}:{f+1}]")
                elif k == 1:
                    A(f"    v_pk_add_f32 v[6:7], v[{F}:{F+1}], v[{f}:{f+1}]")
                    A(f"    v_pk_fma_f32 v[8:9], v[{f}:{f+1}], v[{f}:{f+1}], v[8:9]")
                else:
                    A(f"    v_pk_add_f32 v[6:7], v[6:7], v[{f}:{f+1}]")
                    A(f"    v_pk_fma_f32 v[8:9], v[{f}:{f+1}], v[{f}:{f+1}], v[8:9]")
        A("    v_add_f32 v6, v6, v7")
        A("    v_add_f32 v8, v8, v9")
        if newp and not gw:
            fill = ["    v_mov_b32 v10, s16", "    s_waitcnt lgkmcnt(0)", "    s_lshl_b32 s40, s40, s24", "    s_lshl_b32 s41, s41, s24",
                    "    s_and_b32 s40, s40, s26", "    s_and_b32 s41, s41, s26"]
        else:
            fill = ["    v_mov_b32 v10, s16"] + ["    s_nop 0"] * 5
        for ctl, fl in zip(RED, fill):
            A(fl)
            A(f"    v_add_f32_dpp v6, v6, v6 {ctl}")
            A(f"    v_add_f32_dpp v8, v8, v8 {ctl}")
        A("    v_readlane_b32 s42, v6, 63             ; S1")
        A("    v_readlane_b32 s43, v8, 63             ; S2")
        A("    s_nop 0")
        A("    v_fma_f32 v6, s42, -v4, v10            ; mean")
        A("    v_add_f32 v7, s42, s42")
        A("    v_cvt_pk_bf16_f32 v6, 0, v6")
        A("    v_sub_f32 v6, v6, v10                  ; e")
        A("    v_fma_f32 v7, v6, s25, -v7")
        A("    v_fma_f32 v8, v6, v7, s43              ; 1024 var")
        A("    v_cvt_pk_bf16_f32 v8, 0, v8")
        A("    v_fma_f32 v8, v8, -v4, v5              ; var + 1e-5")
        A("    v_cvt_pk_bf16_f32 v8, 0, v8")
        A("    v_sqrt_f32 v8, v8")
        A("    s_nop 0")
        A("    v_cvt_pk_bf16_f32 v8, 0, v8            ; std")
        A("    v_rcp_f32 v8, v8")
        if newp and gw:
            A("    s_waitcnt lgkmcnt(0)")
            A("    s_lshl_b32 s40, s40, s24")
            A("    s_and_b32 s40, s40, s26")
            A("    s_lshl_b32 s41, s41, s24")
            A("    s_and_b32 s41, s41, s26")
        else:
            A("    s_nop 0")
        A("    v_mul_f32 v12, s40, v8                 ; g / std")
        A("    v_fma_f32 v13, -v6, v12, s41           ; b - e g / std")
        if it == 0 and gl == 0:
            A("    s_load_dword s22, s[10:11], 0x0")
        for h in range(2):
            for j in range(4):
                f = F + 2 * (4 * h + j)
                A(f"    v_pk_fma_f32 v[{f}:{f+1}], v[{f}:{f+1}], v[12:13], v[12:13] op_sel:[0,0,1] op_sel_hi:[1,0,1]")
            hold = {0: h0, 1: h1}.get(it, 0)
            rel = (hold // 10 if h == 0 else hold % 10)
            if rel > it:
                yb = 56 + 8 * it
                for j in range(4):
                    k = 4 * h + j
                    A(f"    v_cvt_pk_bf16_f32 v{yb+k}, v{F+2*k}, v{F+2*k+1}")
                held.setdefault(rel, []).append((it, h, yb + 4 * h)); nst += 1
                continue
            for j in range(4):
                k = 4 * h + j
                A(f"    v_cvt_pk_bf16_f32 v{b+k}, v{F+2*k}, v{F+2*k+1}")
            stf = "" if (nst >= 2 * I - tp or nst < hp) else st
            A(f"    buffer_store_dwordx4 v[{b+4*h}:{b+4*h+3}], v2, s[28:31], s{32+it} offen" + (" offset:1024" if h else "") + stf)
            ops.append(("s", it, h)); nst += 1
        for (r_, h_, reg) in held.get(it, []):
            A(f"    buffer_store_dwordx4 v[{reg}:{reg+3}], v2, s[28:31], s{32+r_} offen" + (" offset:1024" if h_ else "") + st)
            ops.append(("s", r_, h_))
        if it == 0:
            A("    s_lshr_b32 s21, s20, 6                 ; w")
            A("    s_and_b32 s23, s21, 4")
            A("    s_add_u32 s23, s23, s21")
            A("    s_and_b32 s21, s23, 11                 ; (w>>2)*8 + (w&3)")
            A("    s_lshr_b32 s23, s2, 3")
            A("    s_lshl_b32 s34, s23, 6")
            A("    s_or_b32 s34, s34, s21")
            if gl == 1:
                A("    s_load_dword s22, s[10:11], 0x0")
            A("    s_waitcnt lgkmcnt(0)")
            A("    s_cmp_eq_u32 s22, 0")
            A("    s_cbranch_scc1 L_slow")
            A("L_got:")
            A("    s_add_u32 s22, s22, s2")
            A("    s_lshr_b32 s23, s2, 5")
            A("    s_xor_b32 s23, s23, s22")
            A("    s_and_b32 s23, s23, 4")
            A("    s_or_b32 s34, s34, s23")
            A("    s_and_b32 s22, s22, 3")
            A("    s_lshl_b32 s22, s22, 4")
            A("    s_or_b32 s34, s34, s22")
            A("    s_lshl_b32 s34, s34, 11")
            A(f"    s_add_u32 s34, s34, {P[2]*MB4}")
            A(f"    s_add_u32 s35, s34, {((P[3]-P[2])*MB4) & 0xffffffff}")
            known[0] = 99
            upto(2 * it + 1 + d)
        upto(2 * it + 3)
    A("L_done:")
    A("    s_endpgm")
    if not sn:
        slow()
    nv = DATA + nbuf * 8 + (16 if h1 else 8 if h0 else 0)
    A('.section .rodata,"a"')
    A(".p2align 6")
    A(f".amdhsa_kernel {NAME}")
    A(f"  .amdhsa_next_free_vgpr {nv}")
    A("  .amdhsa_next_free_sgpr 48")
    A(f"  .amdhsa_accum_offset {(nv+3)//4*4}")
    A("  .amdhsa_group_segment_fixed_size 0")
    A("  .amdhsa_kernarg_size 48")
    A("  .amdhsa_user_sgpr_count 2")
    A("  .amdhsa_user_sgpr_kernarg_segment_ptr 1")
    A("  .amdhsa_system_sgpr_workgroup_id_x 1")
    A("  .amdhsa_float_denorm_mode_32 3")
    A(".end_amdhsa_kernel")
    return "\n".join(L) + "\n"


if __name__ == "__main__":
    import os, json, subprocess
    outdir = sys.argv[1]
    os.makedirs(outdir, exist_ok=True)
    names = []
    for sp in sys.argv[2:]:
        kw = {k: int(v, 0) for k, v in (kv.split("=") for kv in sp.split(",") if kv)}
        fn = "f_" + sp.replace("=", "").replace(",", "_") + ".s"
        open(f"{outdir}/{fn}", "w").write(gen(**kw))
        names.append(fn)
    r = subprocess.run(["python", "build.py"] + names, cwd=outdir, capture_output=True, text=True)
    if r.returncode or r.stderr:
        print(r.stdout, r.stderr)
        if r.returncode: sys.exit(1)
    open(f"{outdir}/list.txt", "a").write(r.stdout)
    rel = os.path.relpath(os.path.abspath(outdir), "code")
    print(json.dumps(["gen/bench2", f"{rel}/list.txt"] + [f"{rel}/" + x.split(":")[0] for x in open(f"{outdir}/list.txt").read().split()]))
    print(json.dumps([f"{rel}/" + n for n in names]))
```
